```python
import torch

def _softmax(x, axis=-1):
    return torch.softmax(x, dim=axis)
def _gelu(x):
    return torch.nn.functional.gelu(x, approximate="tanh")
def _silu(x):
    return torch.nn.functional.silu(x)
def _sigmoid(x):
    return torch.sigmoid(x)
def _layernorm(x, axis=-1, eps=1e-5):
    m = x.mean(dim=axis, keepdim=True)
    v = x.var(dim=axis, keepdim=True, unbiased=False)
    return (x - m) / torch.sqrt(v + eps)
def _scatter_add(tgt, idx, src, axis=0):
    return tgt.clone().index_add_(axis, idx, src)
def _segment_sum(src, seg, n):
    out = torch.zeros((n,) + src.shape[1:], dtype=src.dtype)
    return out.index_add_(0, seg, src)
def _pad(x, pw):
    flat = tuple(v for pair in reversed(pw) for v in pair)
    return torch.nn.functional.pad(x, flat)

kernel_name = 'interleave_layers__mha_block_cached__glu_gated_reglu__decode'

def setup_inputs():

    _w = (lambda a: (lambda t: t.to(torch.bfloat16) if t.is_floating_point() else t)(torch.as_tensor(a)))
    def _A_setup():
        B, Sq, D = 2, 1, 448
        H, Sk, Dh = 16, 4096, 256
        return {
            "x": _w((lambda *s: torch.randn(*s, dtype=torch.bfloat16) * 0.05)(B, Sq, D)),
            "k_cache": _w((lambda *s: torch.randn(*s, dtype=torch.bfloat16) * 1.6)(B, H, Sk, Dh)),
            "v_cache": _w((lambda *s: torch.randn(*s, dtype=torch.bfloat16) * 0.8)(B, H, Sk, Dh)),
            "wq": _w((lambda *s: torch.randn(*s, dtype=torch.bfloat16) * 1.6)(D, H * Dh) * (D ** -0.5)),
            "wo": _w((lambda *s: torch.randn(*s, dtype=torch.bfloat16) * 0.8)(H * Dh, D) * ((H * Dh) ** -0.5)),
        }
    _A_in = _A_setup()

    def _B_setup():
        B, S, D, F = 2, 1, 448, 1792
        return {
            "x": _w((lambda *s: torch.randn(*s, dtype=torch.bfloat16) * 0.05)(B, S, D)),
            "W_gate": _w((lambda *s: torch.randn(*s, dtype=torch.bfloat16) * 0.4)(D, F) * (2.0 / D) ** 0.5),
            "W_up": _w((lambda *s: torch.randn(*s, dtype=torch.bfloat16) * 0.4)(D, F) * (2.0 / D) ** 0.5),
            "W_down": _w((lambda *s: torch.randn(*s, dtype=torch.bfloat16) * 0.4)(F, D) * (1.0 / F) ** 0.5),
        }
    _B_in = _B_setup()

    return {
        "A_x": _A_in["x"],
        "A_k_cache": _A_in["k_cache"],
        "A_v_cache": _A_in["v_cache"],
        "A_wq": _A_in["wq"],
        "A_wo": _A_in["wo"],
        "B_x": _B_in["x"],
        "B_W_gate": _B_in["W_gate"],
        "B_W_up": _B_in["W_up"],
        "B_W_down": _B_in["W_down"],
    }

def reference(A_x, A_k_cache, A_v_cache, A_wq, A_wo, B_x, B_W_gate, B_W_up, B_W_down):
    def _A_ref(x, k_cache, v_cache, wq, wo):
        B, Sq, D = x.shape
        H, Dh = 16, 256
        q = (lambda x, *d: x.permute(*d))((x @ wq).reshape(B, Sq, H, Dh), 0, 2, 1, 3)
        scores = torch.einsum("bhqd,bhkd->bhqk", q, k_cache) * (Dh ** -0.5)
        p = _softmax(scores, axis=-1)
        o = torch.einsum("bhqk,bhkd->bhqd", p, v_cache)
        return (lambda x, *d: x.permute(*d))(o, 0, 2, 1, 3).reshape(B, Sq, H * Dh) @ wo

    def _B_ref(x, W_gate, W_up, W_down):
        gate = torch.einsum("bsd,df->bsf", x, W_gate)
        up = torch.einsum("bsd,df->bsf", x, W_up)
        gate = gate * (lambda x, dt: x.to(dt))(gate > 0, gate.dtype)
        h = gate * up
        return torch.einsum("bsf,fd->bsd", h, W_down)

    x = A_x
    x = x + _A_ref(_layernorm(x, axis=-1), A_k_cache, A_v_cache, A_wq, A_wo)
    x = x + _B_ref(_layernorm(x, axis=-1), B_W_gate, B_W_up, B_W_down)
    x = x + _A_ref(_layernorm(x, axis=-1), A_k_cache, A_v_cache, A_wq, A_wo)
    x = x + _B_ref(_layernorm(x, axis=-1), B_W_gate, B_W_up, B_W_down)
    return x
```

```python
import re
TRANS = ("v_exp_f32", "v_log_f32", "v_rcp_f32", "v_rsq_f32", "v_sqrt_f32", "v_sin_f32", "v_cos_f32")
def regs_of(tok):
    tok = tok.strip().lstrip('-')
    m = re.fullmatch(r'abs\((.*)\)', tok)
    if m: tok = m.group(1)
    m = re.fullmatch(r'([vas])\[(\d+):(\d+)\]', tok)
    if m: return {(m.group(1), i) for i in range(int(m.group(2)), int(m.group(3)) + 1)}
    m = re.fullmatch(r'([vas])(\d+)', tok)
    if m: return {(m.group(1), int(m.group(2)))}
    if tok in ('vcc', 'vcc_lo', 'vcc_hi'): return {('vcc', 0)}
    if tok in ('exec', 'exec_lo', 'exec_hi'): return {('exec', 0)}
    if tok == 'm0': return {('m0', 0)}
    return set()
class Ins:
    def __init__(self, text):
        self.text = text
        t = text.split(';')[0].strip()
        self.label = t.endswith(':')
        self.op = '' if self.label else t.split()[0]
        rest = t[len(self.op):].strip() if not self.label else ''
        parts = [p.strip() for p in rest.split(',')] if rest else []
        self.mods = ''
        if parts:
            last = parts[-1].split()
        m = re.search(r'\s(offen|offset:|offset0:|off\b|quad_perm|row_|sc0|sc1|nt\b|lds\b|op_sel|neg_lo|clamp|hwreg)', ' ' + rest)
        if m and not self.op.startswith('s_getreg'):
            opstr, self.mods = (' ' + rest)[:m.start()], (' ' + rest)[m.start():]
        else:
            opstr = rest
        self.ops = [p.strip() for p in opstr.split(',') if p.strip()]
        op = self.op
        self.mfma = op.startswith('v_mfma')
        self.valu = op.startswith('v_') and not self.mfma
        self.salu = op.startswith('s_') and not op.startswith(('s_load', 's_waitcnt', 's_nop', 's_barrier', 's_memtime', 's_memrealtime', 's_cbranch', 's_branch', 's_endpgm', 's_sleep', 's_setprio'))
        self.vmem = op.startswith(('buffer_', 'global_'))
        self.ds = op.startswith('ds_')
        self.dpp = self.valu and ('_dpp' in op or 'quad_perm' in self.mods or 'row_' in self.mods)
        self.trans = op.replace('_e32', '').replace('_e64', '') in TRANS
        self.perm = op.startswith('v_permlane')
        self.rdlane = op.startswith(('v_readlane', 'v_readfirstlane'))
        self.dot = op.startswith('v_dot')
        self.branch = op.startswith(('s_cbranch', 's_branch', 's_setpc', 's_swappc'))
        R = [regs_of(o) for o in self.ops]
        self.w = set(); self.r = set(); self.srcC = set(); self.srcAB = set(); self.stdata = set()
        if self.label or not op: return
        if self.mfma:
            self.w = R[0]; self.srcAB = R[1] | R[2]; self.srcC = R[3] if len(R) > 3 else set(); self.r = self.srcAB | self.srcC
        elif self.valu:
            if op.startswith('v_cmp'):
                self.w = R[0]; self.r = set().union(*R[1:])
            elif self.perm:
                self.w = R[0] | R[1]; self.r = R[0] | R[1]
            else:
                self.w = R[0]; self.r = set().union(*R[1:]) if len(R) > 1 else set()
                if op.startswith(('v_fmac', 'v_dot2c', 'v_mac')): self.r |= R[0]
                if op.startswith('v_cndmask') and len(R) == 3: self.r |= {('vcc', 0)}
                if op.startswith(('v_add_co', 'v_addc_co', 'v_sub_co')) and len(R) > 1: self.w |= R[1]
                if self.dpp and op.startswith('v_mov'): self.r |= R[0]
        elif self.vmem:
            lds = re.search(r'\blds\b', self.mods) is not None
            if 'store' in op or 'atomic' in op:
                self.r = set().union(*R)
                if op.startswith('buffer_'): self.stdata = R[0]
                else: self.stdata = R[1]
            elif lds:
                self.r = set().union(*R) | {('m0', 0)}
            else:
                self.w = R[0]; self.r = set().union(*R[1:])
            self.lds = lds
        elif self.ds:
            if op.startswith(('ds_write', 'ds_add', 'ds_max')): self.r = set().union(*R)
            else: self.w = R[0]; self.r = set().union(*R[1:])
        elif op.startswith('s_'):
            if op.startswith(('s_cmp', 's_cbranch', 's_branch', 's_waitcnt', 's_nop', 's_barrier', 's_endpgm', 's_sleep', 's_setprio')):
                self.r = set().union(*R) if R else set()
                if op.startswith('s_cbranch_vcc'): self.r |= {('vcc', 0)}
            else:
                self.w = R[0] if R else set(); self.r = set().union(*R[1:]) if len(R) > 1 else set()
    def states(self):
        if self.label or not self.op: return 0
        if self.op == 's_nop': return int(self.ops[0], 0) + 1
        return 1
def need(prev, cur):
    n = 0
    vw = {x for x in prev.w if x[0] in 'va' and x[0] != 'vcc'}
    sw = {x for x in prev.w if x[0] in ('s', 'vcc')}
    cur_v = {x for x in (cur.r | cur.w) if x[0] in ('v', 'a')}
    cur_vr = {x for x in cur.r if x[0] in ('v', 'a')}
    if prev.valu:
        if vw & cur_vr:
            if cur.dpp: n = max(n, 2)
            if cur.mfma: n = max(n, 2)
            if cur.perm: n = max(n, 2)
            if cur.rdlane: n = max(n, 1)
            if prev.trans and (cur.valu or cur.mfma) : n = max(n, 1)
        if prev.dot and (vw & cur_v) and not (cur.op == prev.op and not (vw & (cur.r - cur.w))):
            n = max(n, 3)
        if sw & cur.r:
            if cur.vmem: n = max(n, 5)
            elif cur.valu: n = max(n, 2)
            elif cur.op.startswith('s_'): n = max(n, 1)
        if prev.perm and (vw & cur_vr) and cur.valu: n = max(n, 1)
    if prev.mfma:
        if cur.mfma:
            if prev.w & cur.srcAB: n = max(n, 8)
            if prev.w & cur.srcC and prev.w != cur.srcC: n = max(n, 6)
            if prev.w & cur.w and not (prev.w == cur.srcC): n = max(n, 0)
        else:
            if prev.w & cur_v: n = max(n, 8)
            if cur.valu and (prev.srcC & cur.w): n = max(n, 3)
    if prev.salu and ('m0', 0) in prev.w and cur.vmem and ('m0', 0) in cur.r: n = max(n, 1)
    if prev.vmem and prev.stdata and len(prev.stdata) >= 3 and (prev.stdata & cur.w):
        n = max(n, 2)
    if prev.salu and ('exec', 0) in prev.w and (cur.mfma or cur.dpp): n = max(n, 1)
    return n
def fix(lines, verbose=False):
    out = []
    nn = 0
    for text in lines:
        cur = Ins(text)
        if cur.label:
            out.append(cur); continue
        if cur.op:
            req = 0; dist = 0
            for p in reversed(out):
                if p.label: continue
                k = need(p, cur)
                if k > dist: req = max(req, k - dist)
                dist += p.states()
                if dist >= 12: break
            if req > 0:
                out.append(Ins(f"s_nop {req-1}")); nn += req
        out.append(cur)
    if verbose: print("inserted wait states:", nn)
    return [x.text for x in out]
```

```python
NAME = "interleave_layers__mha_block_cached__glu_gated_reglu__decode"
def header(launch_lines, comment=""):
    s = f"; {comment}\n"
    for l in launch_lines: s += f"; @launch {l}\n"
    s += '.amdgcn_target "amdgcn-amd-amdhsa--gfx950"\n.text\n'
    return s
def kernel_begin(name):
    return f".globl {name}\n.p2align 8\n.type {name},@function\n{name}:\n"
def kernel_desc(name, vgpr, sgpr, accum, extra=""):
    return f""".section .rodata,"a"
.p2align 6
.amdhsa_kernel {name}
  .amdhsa_next_free_vgpr {vgpr}
  .amdhsa_next_free_sgpr {sgpr}
  .amdhsa_accum_offset {accum}
  .amdhsa_group_segment_fixed_size 0
  .amdhsa_kernarg_size 96
  .amdhsa_user_sgpr_count 2
  .amdhsa_user_sgpr_kernarg_segment_ptr 1
  .amdhsa_system_sgpr_workgroup_id_x 1
{extra}.end_amdhsa_kernel
.text
"""
```

```python
import sys
from asmlib import *
from asmfix import fix

LS   = 0x40000
Q_O, OP_O, ML_O, Y_O, X1_O, H_O, Z_O = 0x0, 0x4000, 0x24000, 0x25000, 0x33000, 0x37000, 0x39000
X2_O = 0x80000
WS_SIZE = 0x90000
STAMP_O = 0x100000
NLQ = 13
VL_WAVE = NLQ * 2048
WO0_L = 4 * VL_WAVE; WO1_L = WO0_L + 8192; WQ_L = WO1_L + 8192; WG_L = WQ_L + 14336; WU_L = WG_L + 7168; WD_L = WU_L + 7168
M_L = WD_L + 7168; XB4_L = M_L; XB7_L = M_L + 2048; MW_L = M_L + 4096
LDS_TOTAL = MW_L + 64
assert LDS_TOTAL <= 163840
LQ = [q for q in range(0, 26, 2)]
RQ = [q for q in range(32) if q not in LQ]
VBASE = 104
OOB = 0x7F000000
T0 = 24
def T(i): return T0 + i
def v(a, n=1): return f"v{a}" if n == 1 else f"v[{a}:{a+n-1}]"
def t(i, n=1): return v(T(i), n)
sW, sWave, sX, sI, sH, sI16 = "s2", "s3", "s4", "s5", "s6", "s7"
WS, SK, SV, SWQ, SWO, SWG, SWU, SWD, XIN, SOUT = [f"s[{a}:{a+3}]" for a in range(8, 48, 4)]
sDbg = "s[48:49]"; sL, sLi, sFast, sSpin, sFlag, sB = "s50", "s51", "s52", "s53", "s54", "s55"
def sBlk(k): return f"s{56+k}"
EX_S2, EX_J2, EX_VIEW, EX_RED = "s[88:89]", "s[90:91]", "s[92:93]", "s[94:95]"
sOnes, sC = "s96", "s97"
vLane = "v0"; vL15 = "v1"; vG = "v2"; vM = [4, 5, 6, 7]; vOdd, vHi = "v8", "v9"; vQoff = "v10"; vRes = "v11"
vV0, vV1, vK, vDum = "v20", "v21", "v22", "v23"

class G:
    def __init__(self, prof=False, dry=False, pol="nt", wpol=""):
        self.L = []; self.n = 0; self.prof = prof; self.nst = 0; self.pol = pol; self.wpol = wpol
    def __call__(self, s): self.L.append(s)
    def lab(self, base):
        self.n += 1; return f"L_{base}_{self.n}"
    def stamp(self, k):
        if self.prof:
            self(f"s_memrealtime s[{64+2*k}:{65+2*k}]"); self("s_waitcnt lgkmcnt(0)")

    def exec_set(self, m): self(f"s_mov_b64 exec, {m}")
    def exec_all(self): self("s_mov_b64 exec, -1")
    def publish(self, op, data, addr, soff, imm=0, fast=True):
        o = f" offset:{imm}" if imm else ""
        if not fast:
            self(f"{op} {data}, {addr}, {WS}, {soff} offen{o} sc1"); return
        a, b = self.lab("pubslow"), self.lab("pubdone")
        self(f"s_cmp_eq_u32 {sFast}, 0"); self(f"s_cbranch_scc1 {a}")
        self(f"{op} {data}, {addr}, {WS}, {soff} offen{o}"); self(f"s_branch {b}")
        self(f"{a}:"); self(f"{op} {data}, {addr}, {WS}, {soff} offen{o} sc1"); self(f"{b}:")
    def check(self, regs, tmp):
        regs = list(regs)
        if len(regs) == 1: self(f"v_cmp_eq_u32 vcc, -1, {v(regs[0])}"); return
        if len(regs) % 2 == 0:
            self(f"v_max_u32 {v(tmp)}, {v(regs[0])}, {v(regs[1])}"); regs = regs[2:]
        else:
            self(f"v_max3_u32 {v(tmp)}, {v(regs[0])}, {v(regs[1])}, {v(regs[2])}"); regs = regs[3:]
        while regs:
            self(f"v_max3_u32 {v(tmp)}, {v(regs[0])}, {v(regs[1])}, {v(tmp)}"); regs = regs[2:]
        self(f"v_cmp_eq_u32 vcc, -1, {v(tmp)}")
    def poll(self, loads, regs, tmp, exec_mask=None):
        lp, ok = self.lab("poll"), self.lab("pollok")
        if exec_mask: self.exec_set(exec_mask)
        self(f"{lp}:")
        for l in loads: self(l)
        self("s_waitcnt vmcnt(0)")
        self.check(regs, tmp)
        self(f"s_cbranch_vccz {ok}")
        self(f"s_sub_u32 {sSpin}, {sSpin}, 1"); self(f"s_cmp_gt_i32 {sSpin}, 0"); self(f"s_cbranch_scc1 {lp}")
        self(f"{ok}:")
        if exec_mask: self.exec_all()
    def tr_addr(self, dst, tile, rowbytes=32):
        self(f"v_lshrrev_b32 {dst}, 2, {vL15}"); self(f"v_lshl_add_u32 {dst}, {vG}, 3, {dst}")
        self(f"v_lshlrev_b32 {dst}, 5, {dst}"); self(f"v_and_b32 {vDum}, 3, {vLane}")
        self(f"v_lshl_add_u32 {dst}, {vDum}, 3, {dst}"); self(f"v_add_u32 {dst}, {tile}, {dst}")
    def tr_reads(self, addr, n, treg, step=1024, half=128):
        for s in range(n):
            self(f"ds_read_b64_tr_b16 {t(treg+4*s, 2)}, {addr} offset:{s*step}")
            self(f"ds_read_b64_tr_b16 {t(treg+4*s+2, 2)}, {addr} offset:{s*step+half}")
    def red8(self, a, tmp):
        self(f"v_permlane16_swap_b32 {v(a[0])}, {v(a[1])}"); self(f"v_permlane16_swap_b32 {v(a[2])}, {v(a[3])}")
        self(f"v_add_f32 {v(a[0])}, {v(a[0])}, {v(a[1])}"); self(f"v_add_f32 {v(a[2])}, {v(a[2])}, {v(a[3])}")
        self(f"v_permlane32_swap_b32 {v(a[0])}, {v(a[2])}")
        self(f"v_add_f32 {v(a[0])}, {v(a[0])}, {v(a[2])}")
        self(f"v_add_f32_dpp {v(a[0])}, {v(a[0])}, {v(a[0])} row_ror:8 row_mask:0xf bank_mask:0xf")

    def addr_Y(self, dst, cb):
        self(f"s_lshl_b32 s98, {sI16}, 12"); self(f"s_lshl_b32 s99, {sH}, 7"); self("s_add_u32 s98, s98, s99")
        self(f"s_add_u32 s98, s98, {Y_O + cb*2048}")
        self(f"v_lshrrev_b32 {dst}, 3, {vL15}"); self(f"v_lshlrev_b32 {dst}, 6, {dst}")
        self(f"v_lshl_add_u32 {dst}, {vG}, 4, {dst}"); self(f"v_add_u32 {dst}, s98, {dst}")
    def addr_Z(self, dst):
        self(f"s_lshl_b32 s98, {sI}, 10"); self(f"s_lshl_b32 s99, {sX}, 7"); self("s_add_u32 s98, s98, s99"); self(f"s_add_u32 s98, s98, {Z_O}")
        self(f"v_lshlrev_b32 {dst}, 6, {vL15}"); self(f"v_lshl_add_u32 {dst}, {vG}, 4, {dst}"); self(f"v_add_u32 {dst}, s98, {dst}")
    def addr_Q(self, dst):
        self(f"s_lshl_b32 s98, {sH}, 10"); self(f"s_lshl_b32 s99, {sI16}, 5"); self("s_add_u32 s98, s98, s99")
        if Q_O: self(f"s_add_u32 s98, s98, {Q_O}")
        self(f"v_lshlrev_b32 {dst}, 9, {vL15}"); self(f"v_lshl_add_u32 {dst}, {vG}, 3, {dst}"); self(f"v_add_u32 {dst}, s98, {dst}")
    def addr_X(self, dst, base, with_x=True):
        self(f"s_lshl_b32 s98, {sI}, 5")
        if with_x: self(f"s_lshl_b32 s99, {sX}, 11"); self("s_add_u32 s98, s98, s99")
        if base: self(f"s_add_u32 s98, s98, {base}")
        self(f"v_bfe_u32 {dst}, {vLane}, 2, 1"); self(f"v_mul_u32_u24 {dst}, 896, {dst}")
        self(f"v_and_b32 {vDum}, 3, {vLane}"); self(f"v_lshl_add_u32 {dst}, {vDum}, 3, {dst}")
        self(f"v_lshrrev_b32 {vDum}, 5, {vLane}"); self(f"v_lshl_add_u32 {dst}, {vDum}, 2, {dst}"); self(f"v_add_u32 {dst}, s98, {dst}")
    def addr_H(self, dst):
        self(f"s_lshl_b32 s98, {sX}, 10"); self(f"s_lshl_b32 s99, {sI}, 4"); self("s_add_u32 s98, s98, s99"); self(f"s_add_u32 s98, s98, {H_O}")
        self(f"v_mul_u32_u24 {dst}, 448, {vL15}"); self(f"v_and_b32 {vDum}, 1, {vG}"); self(f"v_lshl_add_u32 {dst}, {vDum}, 3, {dst}")
        self(f"v_lshrrev_b32 {vDum}, 1, {vG}"); self(f"v_lshl_add_u32 {dst}, {vDum}, 2, {dst}"); self(f"v_add_u32 {dst}, s98, {dst}")
    def addr_OP(self, dst):
        self(f"s_lshl_b32 s98, {sH}, 13"); self(f"s_lshl_b32 s99, {sI16}, 9"); self("s_add_u32 s98, s98, s99"); self(f"s_add_u32 s98, s98, {OP_O}")
        self(f"v_lshlrev_b32 {dst}, 3, {vLane}"); self(f"v_add_u32 {dst}, s98, {dst}")
    def addr_ML(self, dst):
        self(f"s_lshl_b32 s98, {sH}, 7"); self(f"s_lshl_b32 s99, {sI16}, 3"); self("s_add_u32 s98, s98, s99"); self(f"s_add_u32 s98, s98, {ML_O}")
        self(f"v_mov_b32 {dst}, s98")
    def clear(self, op, n, addr, mask, layers=(0, 1)):
        if mask: self.exec_set(mask)
        for L in layers:
            self(f"s_mov_b32 s98, {L*LS}")
            self(f"{op} {t(0, n)}, {addr}, {WS}, s98 offen sc1")
        if mask: self.exec_all()

    def kload(self, f):
        kb, s = f >> 3, f & 7
        self(f"buffer_load_dwordx4 a[{4*f}:{4*f+3}], {vK}, {SK}, {sBlk(kb)} offen offset:{64*s} {self.pol}")
    def vload(self, q):
        kb, qq = q >> 2, q & 3
        va = vV0 if qq < 2 else vV1
        for hf in (0, 1):
            imm = (qq & 1) * 2048 + hf * 256
            if q in RQ:
                r = VBASE + 8 * RQ.index(q) + 4 * hf
                self(f"buffer_load_dwordx4 {v(r,4)}, {va}, {SV}, {sBlk(kb)} offen offset:{imm} {self.pol}")
            else:
                lam = LQ.index(q)
                self(f"s_add_u32 s98, {sBlk(kb)}, {imm}")
                self(f"s_add_u32 m0, s99, {lam*2048 + hf*1024}")
                self(f"buffer_load_dwordx4 {va}, {SV}, s98 offen {self.pol} lds")
    def vgroup(self, qs):
        self(f"s_mul_i32 s99, {sWave}, {VL_WAVE}")
        for q in qs: self.vload(q)
    def tile(self, srd, vaddr, n, stride, ldsbase):
        for k in range(n):
            self(f"s_mov_b32 s98, {k*stride}"); self(f"s_mov_b32 m0, {ldsbase + k*1024}")
            self(f"buffer_load_dwordx4 {vaddr}, {srd}, s98 offen {self.wpol} lds")
    def dummy(self, n):
        if n: self(f"v_mov_b32 {vDum}, {OOB}")
        for k in range(n): self(f"buffer_load_dword v3, {vDum}, {WS}, 0 offen")

    def ln_gemv(self, kind):
        A = self
        xb = XB7_L if kind == 'q' else XB4_L
        A(f"v_and_b32 v12, 1, {vLane}"); A("v_mul_u32_u24 v12, 896, v12"); A(f"v_lshrrev_b32 v13, 1, {vLane}"); A("v_lshl_add_u32 v12, v13, 5, v12")
        A(f"v_add_u32 v13, {xb}, v12")
        A(f"v_and_b32 v14, 1, {vLane}"); A("v_mul_u32_u24 v14, 896, v14"); A(f"v_lshl_add_u32 v14, {vG}, 4, v14"); A(f"v_add_u32 v14, {xb}, v14")
        if kind == 'q':
            A.tr_addr("v15", WQ_L); A.tr_reads("v15", 14, 0)
        else:
            A(f"v_lshrrev_b32 v15, 2, {vL15}"); A(f"v_lshl_add_u32 v15, {vG}, 3, v15"); A("v_lshlrev_b32 v15, 4, v15")
            A(f"v_and_b32 {vDum}, 1, {vLane}"); A(f"v_lshl_add_u32 v15, {vDum}, 3, v15")
            A(f"v_bfe_u32 {vDum}, {vLane}, 1, 1"); A(f"v_mul_u32_u24 {vDum}, {WU_L-WG_L}, {vDum}"); A(f"v_add_u32 v15, v15, {vDum}")
            A(f"v_add_u32 v15, {WG_L}, v15"); A.tr_reads("v15", 14, 0, step=512, half=64)
        for r in range(4): A(f"v_mov_b32 {t(56+r)}, {sOnes}")
        for s in range(14):
            if s in (0, 4, 8, 12): A(f"s_waitcnt lgkmcnt({max(0, 28-2*min(s+4,14)) if 28-2*min(s+4,14) <= 15 else 15})")
            A(f"v_mfma_f32_16x16x32_bf16 v[16:19], {t(4*s,4)}, {t(56,4)}, {'0' if s == 0 else 'v[16:19]'}")
        if kind == 'q': A.addr_Q("v15")
        else: A.addr_H("v15")
        if kind == 'q':
            skip = A.lab("s7nopoll")
            A(f"s_cmp_eq_u32 {sLi}, 0"); A(f"s_cbranch_scc1 {skip}")
            A.poll([f"buffer_load_dwordx4 {t(72,4)}, v12, {XIN}, 0 offen sc1", f"buffer_load_dwordx4 {t(76,4)}, v12, {XIN}, 0 offen offset:16 sc1"],
                   range(T(72), T(80)), T(56), EX_VIEW)
            A(f"{skip}:")
        else:
            A(f"s_lshl_b32 s98, {sX}, 11"); A(f"s_add_u32 s98, s98, {sL}"); A(f"s_add_u32 s98, s98, {X1_O}")
            A.poll([f"buffer_load_dwordx4 {t(72,4)}, v12, {WS}, s98 offen sc1", f"buffer_load_dwordx4 {t(76,4)}, v12, {WS}, s98 offen offset:16 sc1"],
                   range(T(72), T(80)), T(56), EX_VIEW)
        A.stamp(6 if kind == 'f' else 9)
        A("v_mov_b32 v12, 0"); A(f"v_mov_b32 {vDum}, 0")
        A.exec_set(EX_VIEW)
        A(f"ds_write_b128 v13, {t(72,4)}"); A(f"ds_write_b128 v13, {t(76,4)} offset:16")
        for k in range(8): A(f"v_dot2c_f32_bf16 v12, {sOnes}, {t(72+k)}")
        for k in range(8): A(f"v_dot2c_f32_bf16 {vDum}, {t(72+k)}, {t(72+k)}")
        A.exec_all()
        A("s_waitcnt lgkmcnt(0)")
        for s in range(4): A(f"ds_read_b128 {t(56+4*s,4)}, v14 offset:{64*s}")
        st = []
        for d in ("quad_perm:[2,3,0,1]", "row_ror:4", "row_ror:8"):
            st.append(f"v_add_f32_dpp v12, v12, v12 {d} row_mask:0xf bank_mask:0xf")
            st.append(f"v_add_f32_dpp {vDum}, {vDum}, {vDum} {d} row_mask:0xf bank_mask:0xf")
        st += [f"v_permlane16_swap_b32 v12, {vDum}", f"v_add_f32 v12, v12, {vDum}", f"v_mov_b32 {vDum}, v12",
               f"v_permlane32_swap_b32 v12, {vDum}", f"v_add_f32 v12, v12, {vDum}", f"v_mov_b32 {vDum}, v12",
               f"v_permlane16_swap_b32 v12, {vDum}",
               f"v_mul_f32 v12, 0x3b124925, v12",
               f"v_mul_f32 {vDum}, 0x3b124925, {vDum}",
               f"v_fma_f32 {vDum}, -v12, v12, {vDum}",
               f"v_add_f32 {vDum}, 0x3727c5ac, {vDum}",
               f"v_rsq_f32 {vDum}, {vDum}",
               f"v_mul_f32 v12, v12, {vDum}"]
        st += [f"v_mul_f32 v{16+r}, v{16+r}, v12" for r in range(4)]
        si = 0
        for s in range(14):
            rem = min(3, 13 - s)
            A(f"s_waitcnt lgkmcnt({rem})")
            A(f"v_mfma_f32_16x16x32_bf16 {t(72,4)}, {t(4*s,4)}, {t(56+4*(s%4),4)}, {'0' if s == 0 else t(72,4)}")
            if s + 4 < 14: A(f"ds_read_b128 {t(56+4*(s%4),4)}, v14 offset:{64*(s+4)}")
            for _ in range(2):
                if si < len(st): A(st[si]); si += 1
        while si < len(st): A(st[si]); si += 1
        for r in range(4): A(f"v_fma_f32 {t(72+r)}, {t(72+r)}, {vDum}, -v{16+r}")
        if kind == 'q':
            A(f"v_cvt_pk_bf16_f32 {t(76)}, {t(72)}, {t(73)}"); A(f"v_cvt_pk_bf16_f32 {t(77)}, {t(74)}, {t(75)}")
            A.exec_set(EX_J2)
            A(f"s_mul_i32 s98, {sLi}, {LS}")
            A.publish("buffer_store_dwordx2", t(76, 2), "v15", "s98")
            A.exec_all()
        else:
            A(f"v_permlane32_swap_b32 {t(72)}, {t(74)}"); A(f"v_permlane32_swap_b32 {t(73)}, {t(75)}")
            A(f"v_max_f32 {t(72)}, 0, {t(72)}"); A(f"v_max_f32 {t(73)}, 0, {t(73)}")
            A(f"v_mul_f32 {t(72)}, {t(72)}, {t(74)}"); A(f"v_mul_f32 {t(73)}, {t(73)}, {t(75)}")
            A(f"v_cvt_pk_bf16_f32 {t(76)}, {t(72)}, {t(73)}")
            A.exec_set(EX_J2)
            A.publish("buffer_store_dword", t(76), "v15", sL)
            A.exec_all()

    def S2(self, cb):
        A = self
        skip = A.lab("s2skip")
        A(f"s_cmp_ge_u32 {sI16}, 14"); A(f"s_cbranch_scc1 {skip}")
        A("s_waitcnt vmcnt(0)")
        A.tr_addr("v12", WO0_L if cb == 0 else WO1_L); A.tr_reads("v12", 8, 0)
        A(f"s_lshl_b32 s98, {sH}, 13"); A(f"s_add_u32 s98, s98, {OP_O}")
        A(f"v_lshlrev_b32 v13, 9, {vL15}"); A(f"v_lshl_add_u32 v13, {vG}, 4, v13"); A("v_add_u32 v13, s98, v13")
        A(f"s_lshl_b32 s98, {sH}, 7"); A(f"s_add_u32 s98, s98, {ML_O}")
        A(f"v_lshlrev_b32 v14, 3, {vL15}"); A("v_add_u32 v14, s98, v14")
        A.addr_Y("v15", cb)
        loads = [f"buffer_load_dwordx2 {t(64,2)}, v14, {WS}, {sL} offen sc1"]
        loads += [f"buffer_load_dwordx4 {t(32+4*s,4)}, v13, {WS}, {sL} offen offset:{64*s} sc1" for s in range(8)]
        A.poll(loads, range(T(32), T(66)), T(66))
        A.stamp(3)
        A("s_waitcnt lgkmcnt(0)")
        m, l, M, e = t(64), t(65), t(66), t(67)
        st = [f"v_max_f32_dpp {M}, {m}, {m} quad_perm:[1,0,3,2] row_mask:0xf bank_mask:0xf",
              f"v_max_f32_dpp {M}, {M}, {M} quad_perm:[2,3,0,1] row_mask:0xf bank_mask:0xf",
              f"v_max_f32_dpp {M}, {M}, {M} row_half_mirror row_mask:0xf bank_mask:0xf",
              f"v_sub_f32 {e}, {m}, {M}", f"v_exp_f32 {e}, {e}", f"v_mul_f32 {l}, {e}, {l}",
              f"v_add_f32_dpp {l}, {l}, {l} quad_perm:[1,0,3,2] row_mask:0xf bank_mask:0xf",
              f"v_add_f32_dpp {l}, {l}, {l} quad_perm:[2,3,0,1] row_mask:0xf bank_mask:0xf",
              f"v_add_f32_dpp {l}, {l}, {l} row_half_mirror row_mask:0xf bank_mask:0xf",
              f"v_rcp_f32 {l}, {l}", f"v_mul_f32 {e}, {e}, {l}"]
        si = 0
        for s in range(8):
            A(f"v_mfma_f32_16x16x32_bf16 {t(68,4)}, {t(4*s,4)}, {t(32+4*s,4)}, {'0' if s == 0 else t(68,4)}")
            for _ in range(2):
                if si < len(st): A(st[si]); si += 1
        while si < len(st): A(st[si]); si += 1
        for r in range(4): A(f"v_mul_f32 {t(68+r)}, {t(68+r)}, {e}")
        for d in ("quad_perm:[1,0,3,2]", "quad_perm:[2,3,0,1]", "row_half_mirror"):
            for r in range(4): A(f"v_add_f32_dpp {t(68+r)}, {t(68+r)}, {t(68+r)} {d} row_mask:0xf bank_mask:0xf")
        A.exec_set(EX_S2)
        A.publish("buffer_store_dwordx4", t(68, 4), "v15", sL, fast=False)
        A.exec_all()
        A.stamp(4)
        A(f"{skip}:")

    def reduce_stage(self, which):
        A = self
        if which == 'Y':
            A(f"s_lshl_b32 s98, {sI}, 11"); A(f"s_add_u32 s98, s98, {Y_O}")
            A(f"v_lshlrev_b32 v12, 4, {vLane}"); A("v_add_u32 v12, s98, v12")
            A.addr_X("v13", X1_O)
            A.poll([f"buffer_load_dwordx4 {t(0,4)}, v12, {WS}, {sL} offen sc1", f"buffer_load_dwordx4 {t(4,4)}, v12, {WS}, {sL} offen offset:1024 sc1"], range(T(0), T(8)), T(8))
            A.stamp(5)
            for r in range(4): A(f"v_add_f32 {t(r)}, {t(r)}, {t(4+r)}")
        else:
            A(f"s_lshl_b32 s98, {sI}, 10"); A(f"s_add_u32 s98, s98, {Z_O}")
            A(f"v_lshlrev_b32 v12, 4, {vLane}"); A("v_add_u32 v12, s98, v12")
            A.addr_X("v13", 0, with_x=False)
            A.poll([f"buffer_load_dwordx4 {t(0,4)}, v12, {WS}, {sL} offen sc1"], range(T(0), T(4)), T(8))
            A.stamp(8)
        A.red8([T(0), T(1), T(2), T(3)], T(8))
        A(f"v_add_f32 {vRes}, {vRes}, {t(0)}")
        A(f"v_mov_b32 {t(4)}, {vRes}"); A(f"v_mov_b32 {t(5)}, {vRes}")
        A(f"v_permlane16_swap_b32 {t(4)}, {t(5)}")
        A(f"v_cvt_pk_bf16_f32 {t(4)}, {t(4)}, {t(5)}")
        A.exec_set(EX_RED)
        if which == 'Y':
            A.publish("buffer_store_dword", t(4), "v13", sL)
        else:
            fin, done = A.lab("s6fin"), A.lab("s6done")
            A(f"s_cmp_eq_u32 {sLi}, 0"); A(f"s_cbranch_scc0 {fin}")
            A(f"s_lshl_b32 s98, {sX}, 11"); A(f"s_add_u32 s98, s98, {X2_O}")
            A.publish("buffer_store_dword", t(4), "v13", "s98")
            A(f"s_branch {done}")
            A(f"{fin}:")
            A(f"buffer_store_dword {t(4)}, v13, {SOUT}, 0 offen")
            A(f"{done}:")
        A.exec_all()

    def S5(self):
        A = self
        A("s_waitcnt vmcnt(0)")
        A.tr_addr("v12", WD_L); A.tr_reads("v12", 7, 0)
        A(f"s_lshl_b32 s98, {sX}, 10"); A(f"s_add_u32 s98, s98, {H_O}")
        A(f"v_mul_u32_u24 v13, 448, {vL15}"); A(f"v_lshl_add_u32 v13, {vG}, 4, v13"); A("v_add_u32 v13, s98, v13")
        A.addr_Z("v15")
        A.poll([f"buffer_load_dwordx4 {t(28+4*s,4)}, v13, {WS}, {sL} offen offset:{64*s} sc1" for s in range(7)], range(T(28), T(56)), T(56), EX_J2)
        A.stamp(7)
        A("s_waitcnt lgkmcnt(0)")
        for s in range(7):
            A(f"v_mfma_f32_16x16x32_bf16 {t(60,4)}, {t(4*s,4)}, {t(28+4*s,4)}, {'0' if s == 0 else t(60,4)}")
        A.exec_set(EX_J2)
        A.publish("buffer_store_dwordx4", t(60, 4), "v15", sL, fast=False)
        A.exec_all()

    def q_loads(self):
        return [f"buffer_load_dwordx4 {t(4*s,4)}, {vQoff}, {WS}, {sL} offen offset:{64*s} sc1" for s in range(8)]

    def attention(self):
        A = self
        ACC = [32, 36, 40]; SC = 44; PP = 52; PV = 60; LSUM = 68; MX = 69; TMP = 70
        sel = lambda kb: [
            f"v_bfi_b32 {t(TMP)}, {vOdd}, {t(ACC[kb%3]+1)}, {t(ACC[kb%3])}",
            f"v_bfi_b32 {t(TMP+1)}, {vOdd}, {t(ACC[kb%3]+3)}, {t(ACC[kb%3]+2)}",
            f"v_bfi_b32 {t(TMP)}, {vHi}, {t(TMP+1)}, {t(TMP)}",
            f"v_add_f32_dpp {t(TMP)}, {t(TMP)}, {t(TMP)} quad_perm:[1,0,3,2] row_mask:0xf bank_mask:0xf",
            f"v_add_f32_dpp {t(SC+kb)}, {t(TMP)}, {t(TMP)} quad_perm:[2,3,0,1] row_mask:0xf bank_mask:0xf"]
        for kb in range(8):
            pend = sel(kb - 2) if kb >= 2 else []
            slots = {0: 0, 1: 1, 2: 2, 4: 3, 6: 4}
            for s in range(8):
                a = ACC[kb % 3]
                A(f"v_mfma_f32_16x16x32_bf16 {t(a,4)}, a[{4*(8*kb+s)}:{4*(8*kb+s)+3}], {t(4*s,4)}, {'0' if s == 0 else t(a,4)}")
                if pend and s in slots: A(pend[slots[s]])
        for kb in (6, 7):
            for x in sel(kb): A(x)
        s = lambda k: t(SC + k)
        A(f"v_max3_f32 {t(MX)}, {s(0)}, {s(1)}, {s(2)}"); A(f"v_max3_f32 {t(TMP)}, {s(3)}, {s(4)}, {s(5)}")
        A(f"v_max3_f32 {t(MX)}, {s(6)}, {s(7)}, {t(MX)}"); A(f"v_max_f32 {t(MX)}, {t(MX)}, {t(TMP)}")
        A(f"v_max_f32_dpp {t(MX)}, {t(MX)}, {t(MX)} row_ror:4 row_mask:0xf bank_mask:0xf")
        A(f"v_max_f32_dpp {t(MX)}, {t(MX)}, {t(MX)} row_ror:8 row_mask:0xf bank_mask:0xf")
        A(f"v_mov_b32 {t(TMP)}, {t(MX)}"); A(f"v_permlane16_swap_b32 {t(MX)}, {t(TMP)}"); A(f"v_max_f32 {t(MX)}, {t(MX)}, {t(TMP)}")
        A(f"v_mov_b32 {t(TMP)}, {t(MX)}"); A(f"v_permlane32_swap_b32 {t(MX)}, {t(TMP)}"); A(f"v_max_f32 {t(MX)}, {t(MX)}, {t(TMP)}")
        A(f"v_mul_f32 {t(MX)}, {sC}, {t(MX)}")
        def ex(kb):
            o = [f"v_fma_f32 {s(kb)}, {s(kb)}, {sC}, -{t(MX)}", f"v_exp_f32 {s(kb)}, {s(kb)}",
                 f"v_cvt_pk_bf16_f32 {t(PP+kb)}, {s(kb)}, {s(kb)}"]
            o.append(f"v_mov_b32 {t(LSUM)}, {s(kb)}" if kb == 0 else f"v_add_f32 {t(LSUM)}, {t(LSUM)}, {s(kb)}")
            return o
        for x in ex(0): A(x)
        A.stamp(1)
        skip = A.lab("l0skip")
        A(f"s_cmp_eq_u32 {sLi}, 0"); A(f"s_cbranch_scc0 {skip}")
        A.vgroup(range(28, 32))
        lw = [A.lab("tw") for _ in range(4)]; done = A.lab("tdone")
        for k in (1, 2, 3):
            A(f"s_cmp_eq_u32 {sWave}, {k}"); A(f"s_cbranch_scc1 {lw[k]}")
        def rows32(dst, pitch, sbase):
            A(f"v_lshrrev_b32 {dst}, 1, {vLane}"); A(f"v_mul_u32_u24 {dst}, {pitch}, {dst}")
            A(f"v_and_b32 {vDum}, 1, {vLane}"); A(f"v_lshl_add_u32 {dst}, {vDum}, 4, {dst}"); A(f"v_add_u32 {dst}, {sbase}, {dst}")
        def wo_tile(cb):
            A(f"s_mul_i32 s99, {sH}, {256*896}"); A(f"s_lshl_b32 s98, {sI16}, 6"); A("s_add_u32 s99, s99, s98")
            if cb: A("s_add_u32 s99, s99, 32")
            rows32("v12", 896, "s99"); A.tile(SWO, "v12", 8, 32*896, WO0_L if cb == 0 else WO1_L)
        wo_tile(0)
        A(f"s_mul_i32 s99, {sX}, {224*896}"); A(f"s_lshl_b32 s98, {sI}, 5"); A("s_add_u32 s99, s99, s98")
        rows32("v12", 896, "s99"); A.tile(SWD, "v12", 7, 32*896, WD_L)
        A(f"s_branch {done}")
        A(f"{lw[1]}:"); wo_tile(1); A.dummy(7); A(f"s_branch {done}")
        A(f"{lw[2]}:"); A.dummy(15); A(f"s_branch {done}")
        A(f"{lw[3]}:")
        A(f"s_mul_i32 s99, {sX}, 448"); A(f"s_lshl_b32 s98, {sI}, 4"); A("s_add_u32 s99, s99, s98")
        A(f"v_mul_u32_u24 v12, 3584, {vLane}"); A("v_add_u32 v12, s99, v12")
        A.tile(SWG, "v12", 7, 64*3584, WG_L); A.tile(SWU, "v12", 7, 64*3584, WU_L); A.dummy(1)
        A(f"{done}:")
        A(f"{skip}:")
        D = 4
        A(f"s_mul_i32 s98, {sWave}, {VL_WAVE}"); A(f"v_lshlrev_b32 v12, 4, {vLane}"); A("v_add_u32 v12, s98, v12")
        W = lambda q: (31 - q) * 2 + 15
        lastw = [64]
        def vmw(q):
            if q >= 8 and min(W(q), 63) < lastw[0]:
                lastw[0] = min(W(q), 63); A(f"s_waitcnt vmcnt({lastw[0]})")
        dsq = []
        def buf(q): return 8 + 8 * (LQ.index(q) % 3)
        def dsread(q):
            vmw(q)
            lam = LQ.index(q)
            for hf in (0, 1):
                A(f"ds_read_b128 {t(buf(q)+4*hf,4)}, v12 offset:{lam*2048+hf*1024}"); dsq.append(q)
        def abuild(q):
            return [f"v_and_b32_dpp {t(4*(q&1)+r)}, {t(PP+(q>>2))}, v{vM[r]} row_newbcast:{4*(q&3)} row_mask:0xf bank_mask:0xf" for r in range(4)]
        for q in range(D):
            if q in LQ: dsread(q)
        for x in abuild(0): A(x)
        extra = []
        for kb in range(1, 8): extra.append(ex(kb))
        lred = [f"v_add_f32_dpp {t(LSUM)}, {t(LSUM)}, {t(LSUM)} row_ror:4 row_mask:0xf bank_mask:0xf",
                f"v_add_f32_dpp {t(LSUM)}, {t(LSUM)}, {t(LSUM)} row_ror:8 row_mask:0xf bank_mask:0xf",
                f"v_mov_b32 {t(TMP)}, {t(LSUM)}", f"v_permlane16_swap_b32 {t(LSUM)}, {t(TMP)}", f"v_add_f32 {t(LSUM)}, {t(LSUM)}, {t(TMP)}",
                f"v_mov_b32 {t(TMP)}, {t(LSUM)}", f"v_permlane32_swap_b32 {t(LSUM)}, {t(TMP)}", f"v_add_f32 {t(LSUM)}, {t(LSUM)}, {t(TMP)}"]
        for q in range(32):
            if q + D < 32 and (q + D) in LQ: dsread(q + D)
            if q in RQ:
                vmw(q); src = lambda hf: v(VBASE + 8 * RQ.index(q) + 4 * hf, 4)
            else:
                n = len(dsq) - 1 - max(k for k, x in enumerate(dsq) if x == q)
                A(f"s_waitcnt lgkmcnt({n})"); src = lambda hf: t(buf(q) + 4 * hf, 4)
            ab = abuild(q + 1) if q < 31 else []
            ex_ops = []
            kb1 = (q >> 2) + 1
            if kb1 < 8:
                ops = extra[kb1 - 1]
                ex_ops = {0: ops[0:2], 1: ops[2:4], 2: [], 3: []}[q & 3]
            else:
                ex_ops = {0: lred[0:2], 1: lred[2:5], 2: lred[5:8], 3: []}[q & 3]
            first = '0' if q == 0 else None
            A(f"v_mfma_f32_16x16x32_bf16 {t(PV,4)}, {t(4*(q&1),4)}, {src(0)}, {first or t(PV,4)}")
            for x in ab[:2]: A(x)
            A(f"v_mfma_f32_16x16x32_bf16 {t(PV+4,4)}, {t(4*(q&1),4)}, {src(1)}, {first or t(PV+4,4)}")
            for x in ab[2:]: A(x)
            for x in ex_ops: A(x)
        A.stamp(2)
        A(f"s_lshl_b32 s98, {sWave}, 10"); A(f"s_add_u32 s98, s98, {M_L}")
        A(f"v_lshlrev_b32 v12, 5, {vL15}"); A(f"v_lshl_add_u32 v12, {vG}, 4, v12"); A("v_add_u32 v12, s98, v12")
        A(f"s_lshl_b32 s98, {sWave}, 3"); A(f"s_add_u32 s98, s98, {MW_L}"); A("v_mov_b32 v13, s98")
        A("s_mov_b32 exec_hi, 0")
        A(f"ds_write_b128 v12, {t(PV,4)}"); A(f"ds_write_b128 v12, {t(PV+4,4)} offset:512")
        A(f"ds_write2_b32 v13, {t(MX)}, {t(LSUM)} offset0:0 offset1:1")
        A("s_mov_b32 exec_hi, -1")
        A("s_waitcnt lgkmcnt(0)"); A("s_barrier")

    def op_publish(self):
        A = self
        A(f"v_lshlrev_b32 v12, 4, {vLane}"); A(f"v_add_u32 v12, {M_L}, v12"); A(f"v_mov_b32 v13, {MW_L}")
        for w in range(4): A(f"ds_read_b128 {t(4*w,4)}, v12 offset:{1024*w}")
        A(f"ds_read_b128 {t(16,4)}, v13"); A(f"ds_read_b128 {t(20,4)}, v13 offset:16")
        A.addr_OP("v14"); A.addr_ML("v15")
        A("s_waitcnt lgkmcnt(0)")
        m = [t(16), t(18), t(20), t(22)]; l = [t(17), t(19), t(21), t(23)]
        A(f"v_max3_f32 {t(24)}, {m[0]}, {m[1]}, {m[2]}"); A(f"v_max_f32 {t(24)}, {t(24)}, {m[3]}")
        for w in range(4): A(f"v_sub_f32 {m[w]}, {m[w]}, {t(24)}")
        for w in range(4): A(f"v_exp_f32 {m[w]}, {m[w]}")
        for r in range(4): A(f"v_mul_f32 {t(r)}, {t(r)}, {m[0]}")
        A(f"v_mul_f32 {t(25)}, {l[0]}, {m[0]}")
        for w in range(1, 4):
            for r in range(4): A(f"v_fmac_f32 {t(r)}, {t(4*w+r)}, {m[w]}")
            A(f"v_fmac_f32 {t(25)}, {l[w]}, {m[w]}")
        A(f"v_cvt_pk_bf16_f32 {t(4)}, {t(0)}, {t(1)}"); A(f"v_cvt_pk_bf16_f32 {t(5)}, {t(2)}, {t(3)}")
        A.publish("buffer_store_dwordx2", t(4, 2), "v14", sL)
        A.exec_set(1)
        A.publish("buffer_store_dwordx2", t(24, 2), "v15", sL)
        A.exec_all()

    def build(self):
        A = self
        K = NAME + "_kernel"
        A("s_cmp_ge_u32 s2, 256"); A("s_cbranch_scc1 L_end")
        A("s_load_dwordx16 s[64:79], s[0:1], 0"); A("s_load_dwordx8 s[80:87], s[0:1], 64")
        if self.prof: A("s_memrealtime s[100:101]")
        A("v_lshrrev_b32 v1, 6, v0"); A(f"v_and_b32 {vLane}, 63, v0"); A(f"v_readfirstlane_b32 {sWave}, v1")
        A(f"s_and_b32 {sX}, s2, 7"); A(f"s_lshr_b32 {sI}, s2, 3")
        A(f"s_lshl_b32 {sH}, {sX}, 1"); A(f"s_lshr_b32 s98, {sI}, 4"); A(f"s_add_u32 {sH}, {sH}, s98")
        A(f"s_and_b32 {sI16}, {sI}, 15"); A(f"s_lshr_b32 {sB}, {sI16}, 3")
        A(f"s_lshl_b32 s96, {sB}, 25"); A(f"s_lshl_b32 s98, {sH}, 21"); A("s_add_u32 s96, s96, s98")
        A(f"s_and_b32 s98, {sI16}, 7"); A("s_lshl_b32 s98, s98, 18"); A("s_add_u32 s96, s96, s98")
        A(f"s_lshl_b32 s98, {sWave}, 16"); A("s_add_u32 s96, s96, s98")
        A(f"s_lshl_b32 s97, {sWave}, 1"); A(f"s_add_u32 s97, s97, {sI}"); A(f"s_add_u32 s97, s97, {sX}")
        for kb in range(8):
            A(f"s_add_u32 s98, s97, {kb}"); A("s_and_b32 s98, s98, 7"); A("s_lshl_b32 s98, s98, 13"); A(f"s_add_u32 {sBlk(kb)}, s96, s98")
        A(f"v_lshrrev_b32 {vK}, 2, {vLane}"); A(f"v_lshlrev_b32 {vK}, 9, {vK}"); A(f"v_and_b32 {vDum}, 3, {vLane}"); A(f"v_lshl_add_u32 {vK}, {vDum}, 4, {vK}")
        A("s_waitcnt lgkmcnt(0)")
        def srd(base, plo, size):
            A(f"s_mov_b32 s{base}, s{plo}"); A(f"s_mov_b32 s{base+1}, s{plo+1}"); A(f"s_mov_b32 s{base+2}, {size}"); A(f"s_mov_b32 s{base+3}, 0x20000")
        srd(12, 66, 0x4000000)
        for f in range(16): A.kload(f)
        srd(16, 68, 0x4000000); srd(8, 86, WS_SIZE); srd(20, 70, 448*4096*2); srd(24, 72, 4096*448*2)
        srd(28, 76, 448*1792*2); srd(32, 78, 448*1792*2); srd(36, 80, 1792*448*2); srd(40, 64, 1792); srd(44, 82, 1792)
        A("s_mov_b32 s48, s84"); A("s_mov_b32 s49, s85")
        A(f"s_mov_b32 {sL}, 0"); A(f"s_mov_b32 {sLi}, 0"); A(f"s_mov_b32 {sFast}, 0"); A(f"s_mov_b32 {sSpin}, 0x10000")
        A("s_mov_b32 s88, 0x01010101"); A("s_mov_b32 s89, 0x01010101"); A("s_mov_b32 s90, 0x00030003"); A("s_mov_b32 s91, 0x00030003")
        A("s_mov_b32 s92, -1"); A("s_mov_b32 s93, 0x00FFFFFF"); A("s_mov_b32 s94, 0xFF"); A("s_mov_b32 s95, 0xFF")
        A(f"s_mov_b32 {sOnes}, 0x3F803F80"); A(f"s_mov_b32 {sC}, 0x3DB8AA3B")
        A(f"s_getreg_b32 {sFlag}, hwreg(HW_REG_XCC_ID, 0, 4)"); A(f"s_or_b32 {sFlag}, {sFlag}, 0x80")
        A(f"v_and_b32 {vL15}, 15, {vLane}"); A(f"v_lshrrev_b32 {vG}, 4, {vLane}")
        A(f"v_lshlrev_b32 {vV0}, 9, {vG}"); A(f"v_lshl_add_u32 {vV0}, {vL15}, 4, {vV0}"); A(f"v_add_u32 {vV1}, 4096, {vV0}")
        A(f"v_and_b32 {vOdd}, 1, {vLane}"); A(f"v_sub_u32 {vOdd}, 0, {vOdd}")
        A(f"v_bfe_u32 {vHi}, {vLane}, 1, 1"); A(f"v_sub_u32 {vHi}, 0, {vHi}")
        A(f"v_xor_b32 v12, 0xFFFF, {vOdd}")
        A(f"v_lshrrev_b32 v13, 1, {vL15}")
        for r in range(4):
            A(f"v_cmp_eq_u32 vcc, {r}, v13"); A(f"v_cndmask_b32 v{vM[r]}, 0, v12, vcc")
        A(f"s_lshl_b32 s98, {sH}, 10"); A(f"s_lshl_b32 s99, {sB}, 9"); A("s_add_u32 s98, s98, s99")
        A(f"v_and_b32 v12, 3, {vLane}"); A("v_lshlrev_b32 v12, 4, v12"); A("v_add_u32 v12, s98, v12")
        A(f"v_bfe_u32 v13, {vLane}, 2, 2"); A(f"v_mov_b32 {vQoff}, {OOB}")
        A(f"v_cmp_eq_u32 vcc, v13, {vG}"); A(f"v_cndmask_b32 {vQoff}, {vQoff}, v12, vcc")
        for r in range(4): A(f"v_mov_b32 {t(r)}, -1")
        lw = [A.lab("ew") for _ in range(4)]; done = A.lab("edone")
        for k in (1, 2, 3):
            A(f"s_cmp_eq_u32 {sWave}, {k}"); A(f"s_cbranch_scc1 {lw[k]}")
        def clearY(cb):
            sk = A.lab("cy"); A(f"s_cmp_ge_u32 {sI16}, 14"); A(f"s_cbranch_scc1 {sk}")
            A.addr_Y("v12", cb); A.clear("buffer_store_dwordx4", 4, "v12", EX_S2); A(f"{sk}:")
        clearY(0)
        sk = A.lab("cz"); A(f"s_cmp_ge_u32 {sI}, 28"); A(f"s_cbranch_scc1 {sk}")
        A.addr_Z("v12"); A.clear("buffer_store_dwordx4", 4, "v12", EX_J2); A(f"{sk}:")
        A(f"s_branch {done}")
        A(f"{lw[1]}:")
        A(f"v_and_b32 v12, 1, {vLane}"); A("v_mul_u32_u24 v12, 896, v12"); A(f"v_lshrrev_b32 v13, 1, {vLane}"); A("v_lshl_add_u32 v12, v13, 5, v12")
        A.exec_set(EX_VIEW)
        A(f"buffer_load_dwordx4 {t(72,4)}, v12, {XIN}, 0 offen"); A(f"buffer_load_dwordx4 {t(76,4)}, v12, {XIN}, 0 offen offset:16")
        A.exec_all()
        A(f"s_lshl_b32 s99, {sH}, 9"); A(f"s_lshl_b32 s98, {sI16}, 5"); A("s_add_u32 s99, s99, s98")
        A(f"v_lshrrev_b32 v12, 1, {vLane}"); A("v_lshlrev_b32 v12, 13, v12"); A(f"v_and_b32 {vDum}, 1, {vLane}"); A(f"v_lshl_add_u32 v12, {vDum}, 4, v12"); A("v_add_u32 v12, s99, v12")
        A.tile(SWQ, "v12", 14, 32*8192, WQ_L)
        clearY(1)
        A.addr_Q("v12"); A.clear("buffer_store_dwordx2", 2, "v12", EX_J2)
        A(f"s_branch {done}")
        A(f"{lw[2]}:")
        sk = A.lab("cx"); A(f"s_cmp_ge_u32 {sI}, 28"); A(f"s_cbranch_scc1 {sk}")
        A(f"v_bfe_u32 v12, {vLane}, 2, 1"); A("v_mul_u32_u24 v12, 896, v12"); A(f"v_and_b32 {vDum}, 3, {vLane}"); A(f"v_lshl_add_u32 v12, {vDum}, 3, v12")
        A(f"v_lshl_add_u32 v12, {vG}, 1, v12"); A(f"s_lshl_b32 s98, {sI}, 5"); A("v_add_u32 v12, s98, v12")
        A(f"buffer_load_ushort {vRes}, v12, {XIN}, 0 offen")
        A.addr_X("v12", X1_O); A.clear("buffer_store_dword", 1, "v12", EX_RED)
        A.addr_X("v12", X2_O); A.clear("buffer_store_dword", 1, "v12", EX_RED, layers=(0,))
        A(f"{sk}:")
        A(f"s_branch {done}")
        A(f"{lw[3]}:")
        A.addr_OP("v12"); A.clear("buffer_store_dwordx2", 2, "v12", None)
        A.addr_ML("v12"); A.clear("buffer_store_dwordx2", 2, "v12", "1")
        sk = A.lab("ch"); A(f"s_cmp_ge_u32 {sI}, 28"); A(f"s_cbranch_scc1 {sk}")
        A.addr_H("v12"); A.clear("buffer_store_dword", 1, "v12", EX_J2); A(f"{sk}:")
        A(f"{done}:")
        for f in range(16, 48): A.kload(f)
        A("s_waitcnt vmcnt(32)")
        A("s_barrier")
        sk = A.lab("nfl"); A(f"s_cmp_eq_u32 {sWave}, 2"); A(f"s_cbranch_scc0 {sk}")
        A(f"v_lshlrev_b32 {vRes}, 16, {vRes}")
        A(f"s_lshl_b32 s98, {sX}, 5"); A(f"s_add_u32 s98, s98, {sI}"); A("s_and_b32 s99, s98, 3"); A("s_lshl_b32 s99, s99, 3")
        A(f"s_lshl_b32 s99, {sFlag}, s99"); A("s_and_b32 s98, s98, 0xFC")
        A("v_mov_b32 v12, s98"); A("v_mov_b32 v13, s99")
        A.exec_set("1"); A(f"global_atomic_or v12, v13, {sDbg} sc1"); A.exec_all()
        A(f"{sk}:")
        A("L_top:")
        sk = A.lab("ns7"); A(f"s_cmp_eq_u32 {sWave}, 1"); A(f"s_cbranch_scc0 {sk}")
        A.ln_gemv('q')
        A(f"{sk}:")
        l1, att = A.lab("l1q"), A.lab("att")
        A(f"s_cmp_eq_u32 {sLi}, 0"); A(f"s_cbranch_scc0 {l1}")
        for f in range(48, 64): A.kload(f)
        A(f"v_lshlrev_b32 v12, 2, {vLane}")
        A(f"global_load_dword v14, v12, {sDbg} sc1")
        A.vgroup(range(0, 8))
        A("s_waitcnt vmcnt(16)")
        fchk, fok = A.lab("fchk"), A.lab("fok")
        A(f"{fchk}:")
        A("v_and_b32 v13, 0x80808080, v14"); A("v_cmp_ne_u32 vcc, 0x80808080, v13")
        A(f"s_cbranch_vccz {fok}")
        A(f"global_load_dword v14, v12, {sDbg} sc1"); A("s_waitcnt vmcnt(0)")
        A(f"s_sub_u32 {sSpin}, {sSpin}, 1"); A(f"s_cmp_gt_i32 {sSpin}, 0"); A(f"s_cbranch_scc1 {fchk}")
        A(f"{fok}:")
        A(f"s_mul_i32 s98, {sFlag}, 0x01010101"); A("v_cmp_eq_u32 vcc, s98, v14")
        A(f"s_lshl_b32 s99, {sX}, 3"); A("s_lshr_b64 s[98:99], vcc, s99"); A("s_and_b32 s98, s98, 0xFF")
        A("s_cmp_eq_u32 s98, 0xFF"); A(f"s_cselect_b32 {sFast}, 1, 0")
        if getattr(self, 'force_slow', False): A(f"s_mov_b32 {sFast}, 0")
        for x in A.q_loads(): A(x)
        A.vgroup(range(8, 28))
        A("s_waitcnt vmcnt(40)")
        A.check(range(T(0), T(32)), T(32))
        A(f"s_cbranch_vccz {att}")
        A(f"{l1}:")
        A.poll(A.q_loads(), range(T(0), T(32)), T(32))
        A(f"{att}:")
        A.stamp(0)
        A.attention()
        lw = [A.lab("cw") for _ in range(4)]; nxt = A.lab("next")
        for k in (1, 2, 3):
            A(f"s_cmp_eq_u32 {sWave}, {k}"); A(f"s_cbranch_scc1 {lw[k]}")
        A.S2(0)
        A(f"s_cmp_ge_u32 {sI}, 28"); A(f"s_cbranch_scc1 {nxt}")
        A.S5()
        A(f"s_branch {nxt}")
        A(f"{lw[1]}:")
        A.S2(1)
        A(f"s_lshl_b32 s98, {sX}, 11"); A(f"s_add_u32 s98, s98, {X2_O}"); A("s_add_u32 s40, s8, s98"); A("s_addc_u32 s41, s9, 0")
        A(f"s_branch {nxt}")
        A(f"{lw[2]}:")
        A(f"s_cmp_ge_u32 {sI}, 28"); A(f"s_cbranch_scc1 {nxt}")
        A.reduce_stage('Y')
        sk = A.lab("s6skip")
        A(f"s_cmp_eq_u32 {sLi}, 0"); A(f"s_cselect_b32 s98, 0, {sX}"); A("s_cmp_eq_u32 s98, 0"); A(f"s_cbranch_scc0 {nxt}")
        A.reduce_stage('Z')
        A(f"s_branch {nxt}")
        A(f"{lw[3]}:")
        A.op_publish()
        A(f"s_cmp_ge_u32 {sI}, 28"); A(f"s_cbranch_scc1 {nxt}")
        A("s_waitcnt vmcnt(0)")
        A.ln_gemv('f')
        A(f"{nxt}:")
        A(f"s_cmp_eq_u32 {sLi}, 0"); A("s_cbranch_scc0 L_fin")
        A(f"s_mov_b32 {sLi}, 1"); A(f"s_mov_b32 {sL}, {LS}")
        if self.prof: self.dump_stamps(0)
        A("s_branch L_top")
        A("L_fin:")
        if self.prof:
            A.stamp(10); self.dump_stamps(1)
        A("L_end:"); A("s_endpgm")
        body = fix(self.L, verbose=True)
        s = header([f"grid=(256,1,1) block=(256,1,1) lds={LDS_TOTAL}"], "decode: persistent attention (K/V on chip) + GLU chain") + kernel_begin(K) + "\n".join("  " + x for x in body) + "\n" + kernel_desc(K, 512, 102, 256)
        return s
    def dump_stamps(self, layer):
        A = self
        A(f"s_lshl_b32 s98, s2, 2"); A(f"s_add_u32 s98, s98, {sWave}"); A("s_lshl_b32 s98, s98, 8"); A(f"s_add_u32 s98, s98, {STAMP_O + layer*128}")
        A("v_mov_b32 v12, s98")
        A.exec_set("1")
        for k in range(12):
            lo = 64 + 2*k if k < 11 else 100
            A(f"v_mov_b32 v14, s{lo}"); A(f"v_mov_b32 v15, s{lo+1}")
            A(f"global_store_dwordx2 v12, v[14:15], s[8:9] offset:{8*k}")
        A.exec_all()
if __name__ == "__main__":
    import argparse
    ap = argparse.ArgumentParser()
    ap.add_argument("-o", default="k.s"); ap.add_argument("--prof", action="store_true"); ap.add_argument("--slow", action="store_true")
    ap.add_argument("--pol", default="nt"); ap.add_argument("--wpol", default="")
    a = ap.parse_args()
    g = G(prof=a.prof, pol=a.pol, wpol=a.wpol); g.force_slow = a.slow
    open(a.o, "w").write(g.build())
```

```python
import sys
from asmlib import *
from asmfix import fix

LS   = 0x40000
Q_O, OP_O, ML_O, Y_O, X1_O, H_O, Z_O = 0x0, 0x4000, 0x24000, 0x25000, 0x33000, 0x37000, 0x39000
X2_O = 0x80000
WS_SIZE = 0xC4000
STAMP_O = 0x100000
NLQ = 13
VL_WAVE = NLQ * 2048
WO0_L = 4 * VL_WAVE; WO1_L = WO0_L + 8192; WQ_L = WO1_L + 8192; WG_L = WQ_L + 14336; WU_L = WG_L + 7168; WD_L = WU_L + 7168
M_L = WD_L + 7168; XB4_L = M_L; XB7_L = M_L + 2048; MW_L = M_L + 4096
LDS_TOTAL = MW_L + 64
assert LDS_TOTAL <= 163840
LQ = [q for q in range(0, 26, 2)]
RQ = [q for q in range(32) if q not in LQ]
VBASE = 104
OOB = 0x7F000000
T0 = 24
def T(i): return T0 + i
def v(a, n=1): return f"v{a}" if n == 1 else f"v[{a}:{a+n-1}]"
def t(i, n=1): return v(T(i), n)
sW, sWave, sX, sI, sH, sI16 = "s2", "s3", "s4", "s5", "s6", "s7"
WS, SK, SV, SWQ, SWO, SWG, SWU, SWD, XIN, SOUT = [f"s[{a}:{a+3}]" for a in range(8, 48, 4)]
sDbg = "s[48:49]"; sL, sLi, sFast, sSpin, sFlag, sB = "s50", "s51", "s52", "s53", "s54", "s55"
def sBlk(k): return f"s{56+k}"
EX_S2, EX_J2, EX_VIEW, EX_RED = "s[88:89]", "s[90:91]", "s[92:93]", "s[94:95]"
sOnes, sC = "s96", "s97"
vLane = "v0"; vL15 = "v1"; vG = "v2"; vM = [4, 5, 6, 7]; vOdd, vHi = "v8", "v9"; vQoff = "v10"; vRes = "v11"
vV0, vV1, vK, vDum = "v20", "v21", "v22", "v23"

class G:
    def __init__(self, prof=False, dry=False, pol="nt", wpol=""):
        self.instream = True; self.grp = 2; self.K0 = 24; self.pre = 4; self.dbgst = False; self.D = 16; self.FV = 4; self.QV = 12
        self.L = []; self.n = 0; self.prof = prof; self.nst = 0; self.pol = pol; self.wpol = wpol
    def __call__(self, s): self.L.append(s)
    def lab(self, base):
        self.n += 1; return f"L_{base}_{self.n}"
    def dstamp(self, k):
        if self.dbgst:
            self(f"s_memrealtime s[{64+2*k}:{65+2*k}]"); self("s_waitcnt lgkmcnt(0)")
    def stamp(self, k):
        if self.dbgst and k in (3, 4, 5, 6): return
        if self.prof:
            self(f"s_memrealtime s[{64+2*k}:{65+2*k}]"); self("s_waitcnt lgkmcnt(0)")

    def exec_set(self, m): self(f"s_mov_b64 exec, {m}")
    def exec_all(self): self("s_mov_b64 exec, -1")
    def publish(self, op, data, addr, soff, imm=0, fast=True):
        o = f" offset:{imm}" if imm else ""
        if not fast:
            self(f"{op} {data}, {addr}, {WS}, {soff} offen{o} sc1"); return
        a, b = self.lab("pubslow"), self.lab("pubdone")
        self(f"s_cmp_eq_u32 {sFast}, 0"); self(f"s_cbranch_scc1 {a}")
        self(f"{op} {data}, {addr}, {WS}, {soff} offen{o}"); self(f"s_branch {b}")
        self(f"{a}:"); self(f"{op} {data}, {addr}, {WS}, {soff} offen{o} sc1"); self(f"{b}:")
    def check(self, regs, tmp):
        regs = list(regs)
        if len(regs) == 1: self(f"v_cmp_eq_u32 vcc, -1, {v(regs[0])}"); return
        if len(regs) % 2 == 0:
            self(f"v_max_u32 {v(tmp)}, {v(regs[0])}, {v(regs[1])}"); regs = regs[2:]
        else:
            self(f"v_max3_u32 {v(tmp)}, {v(regs[0])}, {v(regs[1])}, {v(regs[2])}"); regs = regs[3:]
        while regs:
            self(f"v_max3_u32 {v(tmp)}, {v(regs[0])}, {v(regs[1])}, {v(tmp)}"); regs = regs[2:]
        self(f"v_cmp_eq_u32 vcc, -1, {v(tmp)}")
    def poll(self, loads, regs, tmp, exec_mask=None):
        lp, ok = self.lab("poll"), self.lab("pollok")
        if exec_mask: self.exec_set(exec_mask)
        self(f"{lp}:")
        for l in loads: self(l)
        self("s_waitcnt vmcnt(0)")
        self.check(regs, tmp)
        self(f"s_cbranch_vccz {ok}")
        self(f"s_sub_u32 {sSpin}, {sSpin}, 1"); self(f"s_cmp_gt_i32 {sSpin}, 0"); self(f"s_cbranch_scc1 {lp}")
        self(f"{ok}:")
        if exec_mask: self.exec_all()
    def tr_addr(self, dst, tile, rowbytes=32):
        self(f"v_lshrrev_b32 {dst}, 2, {vL15}"); self(f"v_lshl_add_u32 {dst}, {vG}, 3, {dst}")
        self(f"v_lshlrev_b32 {dst}, 5, {dst}"); self(f"v_and_b32 {vDum}, 3, {vLane}")
        self(f"v_lshl_add_u32 {dst}, {vDum}, 3, {dst}"); self(f"v_add_u32 {dst}, {tile}, {dst}")
    def tr_reads(self, addr, n, treg, step=1024, half=128):
        for s in range(n):
            self(f"ds_read_b64_tr_b16 {t(treg+4*s, 2)}, {addr} offset:{s*step}")
            self(f"ds_read_b64_tr_b16 {t(treg+4*s+2, 2)}, {addr} offset:{s*step+half}")
    def red8(self, a, tmp):
        self(f"v_permlane16_swap_b32 {v(a[0])}, {v(a[1])}"); self(f"v_permlane16_swap_b32 {v(a[2])}, {v(a[3])}")
        self(f"v_add_f32 {v(a[0])}, {v(a[0])}, {v(a[1])}"); self(f"v_add_f32 {v(a[2])}, {v(a[2])}, {v(a[3])}")
        self(f"v_permlane32_swap_b32 {v(a[0])}, {v(a[2])}")
        self(f"v_add_f32 {v(a[0])}, {v(a[0])}, {v(a[2])}")
        self(f"v_add_f32_dpp {v(a[0])}, {v(a[0])}, {v(a[0])} row_ror:8 row_mask:0xf bank_mask:0xf")

    def addr_Y(self, dst, cb):
        self(f"s_lshl_b32 s98, {sI16}, 12"); self(f"s_lshl_b32 s99, {sH}, 7"); self("s_add_u32 s98, s98, s99")
        self(f"s_add_u32 s98, s98, {Y_O + cb*2048}")
        self(f"v_lshrrev_b32 {dst}, 3, {vL15}"); self(f"v_lshlrev_b32 {dst}, 6, {dst}")
        self(f"v_lshl_add_u32 {dst}, {vG}, 4, {dst}"); self(f"v_add_u32 {dst}, s98, {dst}")
    def addr_Z(self, dst):
        self(f"s_lshl_b32 s98, {sI}, 10"); self(f"s_lshl_b32 s99, {sX}, 7"); self("s_add_u32 s98, s98, s99"); self(f"s_add_u32 s98, s98, {Z_O}")
        self(f"v_lshlrev_b32 {dst}, 6, {vL15}"); self(f"v_lshl_add_u32 {dst}, {vG}, 4, {dst}"); self(f"v_add_u32 {dst}, s98, {dst}")
    def addr_Q(self, dst):
        self(f"s_lshl_b32 s98, {sH}, 10"); self(f"s_lshl_b32 s99, {sI16}, 5"); self("s_add_u32 s98, s98, s99")
        if Q_O: self(f"s_add_u32 s98, s98, {Q_O}")
        self(f"v_lshlrev_b32 {dst}, 9, {vL15}"); self(f"v_lshl_add_u32 {dst}, {vG}, 3, {dst}"); self(f"v_add_u32 {dst}, s98, {dst}")
    def addr_X(self, dst, base, with_x=True):
        self(f"s_lshl_b32 s98, {sI}, 5")
        if with_x: self(f"s_lshl_b32 s99, {sX}, 11"); self("s_add_u32 s98, s98, s99")
        if base: self(f"s_add_u32 s98, s98, {base}")
        self(f"v_bfe_u32 {dst}, {vLane}, 2, 1"); self(f"v_mul_u32_u24 {dst}, 896, {dst}")
        self(f"v_and_b32 {vDum}, 3, {vLane}"); self(f"v_lshl_add_u32 {dst}, {vDum}, 3, {dst}")
        self(f"v_lshrrev_b32 {vDum}, 5, {vLane}"); self(f"v_lshl_add_u32 {dst}, {vDum}, 2, {dst}"); self(f"v_add_u32 {dst}, s98, {dst}")
    def addr_H(self, dst):
        self(f"s_lshl_b32 s98, {sX}, 10"); self(f"s_lshl_b32 s99, {sI}, 4"); self("s_add_u32 s98, s98, s99"); self(f"s_add_u32 s98, s98, {H_O}")
        self(f"v_mul_u32_u24 {dst}, 448, {vL15}"); self(f"v_and_b32 {vDum}, 1, {vG}"); self(f"v_lshl_add_u32 {dst}, {vDum}, 3, {dst}")
        self(f"v_lshrrev_b32 {vDum}, 1, {vG}"); self(f"v_lshl_add_u32 {dst}, {vDum}, 2, {dst}"); self(f"v_add_u32 {dst}, s98, {dst}")
    def addr_OP(self, dst):
        self(f"s_lshl_b32 s98, {sH}, 13"); self(f"s_lshl_b32 s99, {sI16}, 9"); self("s_add_u32 s98, s98, s99"); self(f"s_add_u32 s98, s98, {OP_O}")
        self(f"v_lshlrev_b32 {dst}, 3, {vLane}"); self(f"v_add_u32 {dst}, s98, {dst}")
    def addr_ML(self, dst):
        self(f"s_lshl_b32 s98, {sH}, 7"); self(f"s_lshl_b32 s99, {sI16}, 3"); self("s_add_u32 s98, s98, s99"); self(f"s_add_u32 s98, s98, {ML_O}")
        self(f"v_mov_b32 {dst}, s98")
    def clear(self, op, n, addr, mask, layers=(0, 1)):
        if mask: self.exec_set(mask)
        for L in layers:
            self(f"s_mov_b32 s98, {L*LS}")
            self(f"{op} {t(0, n)}, {addr}, {WS}, s98 offen sc1")
        if mask: self.exec_all()

    def kload(self, f):
        kb, s = f >> 3, f & 7
        self(f"buffer_load_dwordx4 a[{4*f}:{4*f+3}], {vK}, {SK}, {sBlk(kb)} offen offset:{64*s} {self.pol}")
    def kpaced(self, f0, f1, D):
        for f in range(f0, f1):
            if D and f % self.grp == 0 and f >= D: self(f"s_waitcnt vmcnt({D-self.grp})")
            self.kload(f)
    def wo_tile(self, cb):
        A = self
        A(f"s_mul_i32 s99, {sH}, {256*896}"); A(f"s_lshl_b32 s98, {sI16}, 6"); A("s_add_u32 s99, s99, s98")
        if cb: A("s_add_u32 s99, s99, 32")
        A.rows32("v12", 896, "s99"); A.tile(SWO, "v12", 8, 32*896, WO0_L if cb == 0 else WO1_L)
    def rows32(self, dst, pitch, sbase):
        A = self
        A(f"v_lshrrev_b32 {dst}, 1, {vLane}"); A(f"v_mul_u32_u24 {dst}, {pitch}, {dst}")
        A(f"v_and_b32 {vDum}, 1, {vLane}"); A(f"v_lshl_add_u32 {dst}, {vDum}, 4, {dst}"); A(f"v_add_u32 {dst}, {sbase}, {dst}")
    def wd_tile(self):
        A = self
        A(f"s_mul_i32 s99, {sX}, {224*896}"); A(f"s_lshl_b32 s98, {sI}, 5"); A("s_add_u32 s99, s99, s98")
        A.rows32("v12", 896, "s99"); A.tile(SWD, "v12", 7, 32*896, WD_L)
    def wgu_tiles(self):
        A = self
        A(f"s_mul_i32 s99, {sX}, 448"); A(f"s_lshl_b32 s98, {sI}, 4"); A("s_add_u32 s99, s99, s98")
        A(f"v_mul_u32_u24 v12, 3584, {vLane}"); A("v_add_u32 v12, s99, v12")
        A.tile(SWG, "v12", 7, 64*3584, WG_L); A.tile(SWU, "v12", 7, 64*3584, WU_L)
    def vload(self, q):
        kb, qq = q >> 2, q & 3
        va = vV0 if qq < 2 else vV1
        for hf in (0, 1):
            imm = (qq & 1) * 2048 + hf * 256
            if q in RQ:
                r = VBASE + 8 * RQ.index(q) + 4 * hf
                self(f"buffer_load_dwordx4 {v(r,4)}, {va}, {SV}, {sBlk(kb)} offen offset:{imm} {self.pol}")
            else:
                lam = LQ.index(q)
                self(f"s_add_u32 s98, {sBlk(kb)}, {imm}")
                self(f"s_add_u32 m0, s99, {lam*2048 + hf*1024}")
                self(f"buffer_load_dwordx4 {va}, {SV}, s98 offen {self.pol} lds")
    def vgroup(self, qs):
        self(f"s_mul_i32 s99, {sWave}, {VL_WAVE}")
        for q in qs: self.vload(q)
    def tile(self, srd, vaddr, n, stride, ldsbase):
        for k in range(n):
            self(f"s_mov_b32 s98, {k*stride}"); self(f"s_mov_b32 m0, {ldsbase + k*1024}")
            self(f"buffer_load_dwordx4 {vaddr}, {srd}, s98 offen {self.wpol} lds")
    def dummy(self, n):
        if n: self(f"v_mov_b32 {vDum}, {OOB}")
        for k in range(n): self(f"buffer_load_dword v3, {vDum}, {WS}, 0 offen")

    def ln_gemv(self, kind):
        A = self
        xb = XB7_L if kind == 'q' else XB4_L
        A(f"v_and_b32 v12, 1, {vLane}"); A("v_mul_u32_u24 v12, 896, v12"); A(f"v_lshrrev_b32 v13, 1, {vLane}"); A("v_lshl_add_u32 v12, v13, 5, v12")
        A(f"v_add_u32 v13, {xb}, v12")
        A(f"v_and_b32 v14, 1, {vLane}"); A("v_mul_u32_u24 v14, 896, v14"); A(f"v_lshl_add_u32 v14, {vG}, 4, v14"); A(f"v_add_u32 v14, {xb}, v14")
        if kind == 'q':
            A.tr_addr("v15", WQ_L); A.tr_reads("v15", 14, 0)
        else:
            A(f"v_lshrrev_b32 v15, 2, {vL15}"); A(f"v_lshl_add_u32 v15, {vG}, 3, v15"); A("v_lshlrev_b32 v15, 4, v15")
            A(f"v_and_b32 {vDum}, 1, {vLane}"); A(f"v_lshl_add_u32 v15, {vDum}, 3, v15")
            A(f"v_bfe_u32 {vDum}, {vLane}, 1, 1"); A(f"v_mul_u32_u24 {vDum}, {WU_L-WG_L}, {vDum}"); A(f"v_add_u32 v15, v15, {vDum}")
            A(f"v_add_u32 v15, {WG_L}, v15"); A.tr_reads("v15", 14, 0, step=512, half=64)
        for r in range(4): A(f"v_mov_b32 {t(56+r)}, {sOnes}")
        for s in range(14):
            if s in (0, 4, 8, 12): A(f"s_waitcnt lgkmcnt({max(0, 28-2*min(s+4,14)) if 28-2*min(s+4,14) <= 15 else 15})")
            A(f"v_mfma_f32_16x16x32_bf16 v[16:19], {t(4*s,4)}, {t(56,4)}, {'0' if s == 0 else 'v[16:19]'}")
        if kind == 'q': A.addr_Q("v15")
        else: A.addr_H("v15")
        if kind == 'q':
            skip = A.lab("s7nopoll")
            A(f"s_cmp_eq_u32 {sLi}, 0"); A(f"s_cbranch_scc1 {skip}")
            A.poll([f"buffer_load_dwordx4 {t(72,4)}, v12, {XIN}, 0 offen sc1", f"buffer_load_dwordx4 {t(76,4)}, v12, {XIN}, 0 offen offset:16 sc1"],
                   range(T(72), T(80)), T(56), EX_VIEW)
            A(f"{skip}:")
        else:
            A(f"s_lshl_b32 s98, {sX}, 11"); A(f"s_add_u32 s98, s98, {sL}"); A(f"s_add_u32 s98, s98, {X1_O}")
            A.poll([f"buffer_load_dwordx4 {t(72,4)}, v12, {WS}, s98 offen sc1", f"buffer_load_dwordx4 {t(76,4)}, v12, {WS}, s98 offen offset:16 sc1"],
                   range(T(72), T(80)), T(56), EX_VIEW)
        A.stamp(6 if kind == 'f' else 9)
        A("v_mov_b32 v12, 0"); A(f"v_mov_b32 {vDum}, 0")
        A.exec_set(EX_VIEW)
        A(f"ds_write_b128 v13, {t(72,4)}"); A(f"ds_write_b128 v13, {t(76,4)} offset:16")
        for k in range(8): A(f"v_dot2c_f32_bf16 v12, {sOnes}, {t(72+k)}")
        for k in range(8): A(f"v_dot2c_f32_bf16 {vDum}, {t(72+k)}, {t(72+k)}")
        A.exec_all()
        A("s_waitcnt lgkmcnt(0)")
        for s in range(4): A(f"ds_read_b128 {t(56+4*s,4)}, v14 offset:{64*s}")
        st = []
        for d in ("quad_perm:[2,3,0,1]", "row_ror:4", "row_ror:8"):
            st.append(f"v_add_f32_dpp v12, v12, v12 {d} row_mask:0xf bank_mask:0xf")
            st.append(f"v_add_f32_dpp {vDum}, {vDum}, {vDum} {d} row_mask:0xf bank_mask:0xf")
        st += [f"v_permlane16_swap_b32 v12, {vDum}", f"v_add_f32 v12, v12, {vDum}", f"v_mov_b32 {vDum}, v12",
               f"v_permlane32_swap_b32 v12, {vDum}", f"v_add_f32 v12, v12, {vDum}", f"v_mov_b32 {vDum}, v12",
               f"v_permlane16_swap_b32 v12, {vDum}",
               f"v_mul_f32 v12, 0x3b124925, v12",
               f"v_mul_f32 {vDum}, 0x3b124925, {vDum}",
               f"v_fma_f32 {vDum}, -v12, v12, {vDum}",
               f"v_add_f32 {vDum}, 0x3727c5ac, {vDum}",
               f"v_rsq_f32 {vDum}, {vDum}",
               f"v_mul_f32 v12, v12, {vDum}"]
        st += [f"v_mul_f32 v{16+r}, v{16+r}, v12" for r in range(4)]
        si = 0
        for s in range(14):
            rem = min(3, 13 - s)
            A(f"s_waitcnt lgkmcnt({rem})")
            A(f"v_mfma_f32_16x16x32_bf16 {t(72,4)}, {t(4*s,4)}, {t(56+4*(s%4),4)}, {'0' if s == 0 else t(72,4)}")
            if s + 4 < 14: A(f"ds_read_b128 {t(56+4*(s%4),4)}, v14 offset:{64*(s+4)}")
            for _ in range(2):
                if si < len(st): A(st[si]); si += 1
        while si < len(st): A(st[si]); si += 1
        for r in range(4): A(f"v_fma_f32 {t(72+r)}, {t(72+r)}, {vDum}, -v{16+r}")
        if kind == 'q':
            A(f"v_cvt_pk_bf16_f32 {t(76)}, {t(72)}, {t(73)}"); A(f"v_cvt_pk_bf16_f32 {t(77)}, {t(74)}, {t(75)}")
            A.exec_set(EX_J2)
            A(f"s_mul_i32 s98, {sLi}, {LS}")
            A.publish("buffer_store_dwordx2", t(76, 2), "v15", "s98")
            A.exec_all()
        else:
            A(f"v_permlane32_swap_b32 {t(72)}, {t(74)}"); A(f"v_permlane32_swap_b32 {t(73)}, {t(75)}")
            A(f"v_max_f32 {t(72)}, 0, {t(72)}"); A(f"v_max_f32 {t(73)}, 0, {t(73)}")
            A(f"v_mul_f32 {t(72)}, {t(72)}, {t(74)}"); A(f"v_mul_f32 {t(73)}, {t(73)}, {t(75)}")
            A(f"v_cvt_pk_bf16_f32 {t(76)}, {t(72)}, {t(73)}")
            A.exec_set(EX_J2)
            A.publish("buffer_store_dword", t(76), "v15", sL)
            A.exec_all()

    def S2(self, cb):
        A = self
        skip = A.lab("s2skip")
        A(f"s_cmp_ge_u32 {sI16}, 14"); A(f"s_cbranch_scc1 {skip}")
        A("s_waitcnt vmcnt(0)")
        A.tr_addr("v12", WO0_L if cb == 0 else WO1_L); A.tr_reads("v12", 8, 0)
        A(f"s_lshl_b32 s98, {sH}, 13"); A(f"s_add_u32 s98, s98, {OP_O}")
        A(f"v_lshlrev_b32 v13, 9, {vL15}"); A(f"v_lshl_add_u32 v13, {vG}, 4, v13"); A("v_add_u32 v13, s98, v13")
        A(f"s_lshl_b32 s98, {sH}, 7"); A(f"s_add_u32 s98, s98, {ML_O}")
        A(f"v_lshlrev_b32 v14, 3, {vL15}"); A("v_add_u32 v14, s98, v14")
        A.addr_Y("v15", cb)
        loads = [f"buffer_load_dwordx2 {t(64,2)}, v14, {WS}, {sL} offen sc1"]
        loads += [f"buffer_load_dwordx4 {t(32+4*s,4)}, v13, {WS}, {sL} offen offset:{64*s} sc1" for s in range(8)]
        A.stamp(5)
        A.poll(loads, range(T(32), T(66)), T(66))
        A.stamp(3)
        A("s_waitcnt lgkmcnt(0)")
        m, l, M, e = t(64), t(65), t(66), t(67)
        st = [f"v_max_f32_dpp {M}, {m}, {m} quad_perm:[1,0,3,2] row_mask:0xf bank_mask:0xf",
              f"v_max_f32_dpp {M}, {M}, {M} quad_perm:[2,3,0,1] row_mask:0xf bank_mask:0xf",
              f"v_max_f32_dpp {M}, {M}, {M} row_half_mirror row_mask:0xf bank_mask:0xf",
              f"v_sub_f32 {e}, {m}, {M}", f"v_exp_f32 {e}, {e}", f"v_mul_f32 {l}, {e}, {l}",
              f"v_add_f32_dpp {l}, {l}, {l} quad_perm:[1,0,3,2] row_mask:0xf bank_mask:0xf",
              f"v_add_f32_dpp {l}, {l}, {l} quad_perm:[2,3,0,1] row_mask:0xf bank_mask:0xf",
              f"v_add_f32_dpp {l}, {l}, {l} row_half_mirror row_mask:0xf bank_mask:0xf",
              f"v_rcp_f32 {l}, {l}", f"v_mul_f32 {e}, {e}, {l}"]
        si = 0
        for s in range(8):
            A(f"v_mfma_f32_16x16x32_bf16 {t(68,4)}, {t(4*s,4)}, {t(32+4*s,4)}, {'0' if s == 0 else t(68,4)}")
            for _ in range(2):
                if si < len(st): A(st[si]); si += 1
        while si < len(st): A(st[si]); si += 1
        for r in range(4): A(f"v_mul_f32 {t(68+r)}, {t(68+r)}, {e}")
        for d in ("quad_perm:[1,0,3,2]", "quad_perm:[2,3,0,1]", "row_half_mirror"):
            for r in range(4): A(f"v_add_f32_dpp {t(68+r)}, {t(68+r)}, {t(68+r)} {d} row_mask:0xf bank_mask:0xf")
        A.exec_set(EX_S2)
        A.publish("buffer_store_dwordx4", t(68, 4), "v15", sL, fast=False)
        A.exec_all()
        A.stamp(4)
        A(f"{skip}:")

    def reduce_stage(self, which):
        A = self
        if which == 'Y':
            A(f"s_lshl_b32 s98, {sI}, 11"); A(f"s_add_u32 s98, s98, {Y_O}")
            A(f"v_lshlrev_b32 v12, 4, {vLane}"); A("v_add_u32 v12, s98, v12")
            A.addr_X("v13", X1_O)
            A.poll([f"buffer_load_dwordx4 {t(0,4)}, v12, {WS}, {sL} offen sc1", f"buffer_load_dwordx4 {t(4,4)}, v12, {WS}, {sL} offen offset:1024 sc1"], range(T(0), T(8)), T(8))
            A.stamp(5)
            for r in range(4): A(f"v_add_f32 {t(r)}, {t(r)}, {t(4+r)}")
        else:
            A(f"s_lshl_b32 s98, {sI}, 10"); A(f"s_add_u32 s98, s98, {Z_O}")
            A(f"v_lshlrev_b32 v12, 4, {vLane}"); A("v_add_u32 v12, s98, v12")
            A.addr_X("v13", 0, with_x=False)
            A.poll([f"buffer_load_dwordx4 {t(0,4)}, v12, {WS}, {sL} offen sc1"], range(T(0), T(4)), T(8))
            A.stamp(8)
        A.red8([T(0), T(1), T(2), T(3)], T(8))
        A(f"v_add_f32 {vRes}, {vRes}, {t(0)}")
        A(f"v_mov_b32 {t(4)}, {vRes}"); A(f"v_mov_b32 {t(5)}, {vRes}")
        A(f"v_permlane16_swap_b32 {t(4)}, {t(5)}")
        A(f"v_cvt_pk_bf16_f32 {t(4)}, {t(4)}, {t(5)}")
        A.exec_set(EX_RED)
        if which == 'Y':
            A.publish("buffer_store_dword", t(4), "v13", sL)
        else:
            fin, done = A.lab("s6fin"), A.lab("s6done")
            A(f"s_cmp_eq_u32 {sLi}, 0"); A(f"s_cbranch_scc0 {fin}")
            A(f"s_lshl_b32 s98, {sX}, 11"); A(f"s_add_u32 s98, s98, {X2_O}")
            A.publish("buffer_store_dword", t(4), "v13", "s98")
            A(f"s_branch {done}")
            A(f"{fin}:")
            A(f"buffer_store_dword {t(4)}, v13, {SOUT}, 0 offen")
            A(f"{done}:")
        A.exec_all()

    def S5(self):
        A = self
        A("s_waitcnt vmcnt(0)")
        A.tr_addr("v12", WD_L); A.tr_reads("v12", 7, 0)
        A(f"s_lshl_b32 s98, {sX}, 10"); A(f"s_add_u32 s98, s98, {H_O}")
        A(f"v_mul_u32_u24 v13, 448, {vL15}"); A(f"v_lshl_add_u32 v13, {vG}, 4, v13"); A("v_add_u32 v13, s98, v13")
        A.addr_Z("v15")
        A.poll([f"buffer_load_dwordx4 {t(28+4*s,4)}, v13, {WS}, {sL} offen offset:{64*s} sc1" for s in range(7)], range(T(28), T(56)), T(56), EX_J2)
        A.stamp(7)
        A("s_waitcnt lgkmcnt(0)")
        for s in range(7):
            A(f"v_mfma_f32_16x16x32_bf16 {t(60,4)}, {t(4*s,4)}, {t(28+4*s,4)}, {'0' if s == 0 else t(60,4)}")
        A.exec_set(EX_J2)
        A.publish("buffer_store_dwordx4", t(60, 4), "v15", sL, fast=False)
        A.exec_all()

    def q_loads(self):
        return [f"buffer_load_dwordx4 {t(4*s,4)}, {vQoff}, {WS}, {sL} offen offset:{64*s} sc1" for s in range(8)]

    def attention(self):
        A = self
        ACC = [32, 36, 40]; SC = 44; PP = 52; PV = 60; LSUM = 68; MX = 69; TMP = 70
        sel = lambda kb: [
            f"v_bfi_b32 {t(TMP)}, {vOdd}, {t(ACC[kb%3]+1)}, {t(ACC[kb%3])}",
            f"v_bfi_b32 {t(TMP+1)}, {vOdd}, {t(ACC[kb%3]+3)}, {t(ACC[kb%3]+2)}",
            f"v_bfi_b32 {t(TMP)}, {vHi}, {t(TMP+1)}, {t(TMP)}",
            f"v_add_f32_dpp {t(TMP)}, {t(TMP)}, {t(TMP)} quad_perm:[1,0,3,2] row_mask:0xf bank_mask:0xf",
            f"v_add_f32_dpp {t(SC+kb)}, {t(TMP)}, {t(TMP)} quad_perm:[2,3,0,1] row_mask:0xf bank_mask:0xf"]
        for kb in range(8):
            pend = sel(kb - 2) if kb >= 2 else []
            slots = {0: 0, 1: 1, 2: 2, 4: 3, 6: 4}
            for s in range(8):
                a = ACC[kb % 3]
                A(f"v_mfma_f32_16x16x32_bf16 {t(a,4)}, a[{4*(8*kb+s)}:{4*(8*kb+s)+3}], {t(4*s,4)}, {'0' if s == 0 else t(a,4)}")
                if pend and s in slots: A(pend[slots[s]])
        for kb in (6, 7):
            for x in sel(kb): A(x)
        s = lambda k: t(SC + k)
        A(f"v_max3_f32 {t(MX)}, {s(0)}, {s(1)}, {s(2)}"); A(f"v_max3_f32 {t(TMP)}, {s(3)}, {s(4)}, {s(5)}")
        A(f"v_max3_f32 {t(MX)}, {s(6)}, {s(7)}, {t(MX)}"); A(f"v_max_f32 {t(MX)}, {t(MX)}, {t(TMP)}")
        A(f"v_max_f32_dpp {t(MX)}, {t(MX)}, {t(MX)} row_ror:4 row_mask:0xf bank_mask:0xf")
        A(f"v_max_f32_dpp {t(MX)}, {t(MX)}, {t(MX)} row_ror:8 row_mask:0xf bank_mask:0xf")
        A(f"v_mov_b32 {t(TMP)}, {t(MX)}"); A(f"v_permlane16_swap_b32 {t(MX)}, {t(TMP)}"); A(f"v_max_f32 {t(MX)}, {t(MX)}, {t(TMP)}")
        A(f"v_mov_b32 {t(TMP)}, {t(MX)}"); A(f"v_permlane32_swap_b32 {t(MX)}, {t(TMP)}"); A(f"v_max_f32 {t(MX)}, {t(MX)}, {t(TMP)}")
        A(f"v_mul_f32 {t(MX)}, {sC}, {t(MX)}")
        def ex(kb):
            o = [f"v_fma_f32 {s(kb)}, {s(kb)}, {sC}, -{t(MX)}", f"v_exp_f32 {s(kb)}, {s(kb)}",
                 f"v_cvt_pk_bf16_f32 {t(PP+kb)}, {s(kb)}, {s(kb)}"]
            o.append(f"v_mov_b32 {t(LSUM)}, {s(kb)}" if kb == 0 else f"v_add_f32 {t(LSUM)}, {t(LSUM)}, {s(kb)}")
            return o
        for x in ex(0): A(x)
        A.stamp(1)
        skip = A.lab("l0skip")
        A(f"s_cmp_eq_u32 {sLi}, 0"); A(f"s_cbranch_scc0 {skip}")
        A.vgroup(range(self.QV, 32))
        A(f"{skip}:")
        D = 4
        A(f"s_mul_i32 s98, {sWave}, {VL_WAVE}"); A(f"v_lshlrev_b32 v12, 4, {vLane}"); A("v_add_u32 v12, s98, v12")
        W = lambda q: (31 - q) * 2
        lastw = [64]
        def vmw(q):
            if q >= self.FV and min(W(q), 63) < lastw[0]:
                lastw[0] = min(W(q), 63); A(f"s_waitcnt vmcnt({lastw[0]})")
        dsq = []
        def buf(q): return 8 + 8 * (LQ.index(q) % 3)
        def dsread(q):
            vmw(q)
            lam = LQ.index(q)
            for hf in (0, 1):
                A(f"ds_read_b128 {t(buf(q)+4*hf,4)}, v12 offset:{lam*2048+hf*1024}"); dsq.append(q)
        def abuild(q):
            return [f"v_and_b32_dpp {t(4*(q&1)+r)}, {t(PP+(q>>2))}, v{vM[r]} row_newbcast:{4*(q&3)} row_mask:0xf bank_mask:0xf" for r in range(4)]
        for q in range(D):
            if q in LQ: dsread(q)
        for x in abuild(0): A(x)
        extra = []
        for kb in range(1, 8): extra.append(ex(kb))
        lred = [f"v_add_f32_dpp {t(LSUM)}, {t(LSUM)}, {t(LSUM)} row_ror:4 row_mask:0xf bank_mask:0xf",
                f"v_add_f32_dpp {t(LSUM)}, {t(LSUM)}, {t(LSUM)} row_ror:8 row_mask:0xf bank_mask:0xf",
                f"v_mov_b32 {t(TMP)}, {t(LSUM)}", f"v_permlane16_swap_b32 {t(LSUM)}, {t(TMP)}", f"v_add_f32 {t(LSUM)}, {t(LSUM)}, {t(TMP)}",
                f"v_mov_b32 {t(TMP)}, {t(LSUM)}", f"v_permlane32_swap_b32 {t(LSUM)}, {t(TMP)}", f"v_add_f32 {t(LSUM)}, {t(LSUM)}, {t(TMP)}"]
        for q in range(32):
            if q + D < 32 and (q + D) in LQ: dsread(q + D)
            if q in RQ:
                vmw(q); src = lambda hf: v(VBASE + 8 * RQ.index(q) + 4 * hf, 4)
            else:
                n = len(dsq) - 1 - max(k for k, x in enumerate(dsq) if x == q)
                A(f"s_waitcnt lgkmcnt({n})"); src = lambda hf: t(buf(q) + 4 * hf, 4)
            ab = abuild(q + 1) if q < 31 else []
            ex_ops = []
            kb1 = (q >> 2) + 1
            if kb1 < 8:
                ops = extra[kb1 - 1]
                ex_ops = {0: ops[0:2], 1: ops[2:4], 2: [], 3: []}[q & 3]
            else:
                ex_ops = {0: lred[0:2], 1: lred[2:5], 2: lred[5:8], 3: []}[q & 3]
            first = '0' if q == 0 else None
            A(f"v_mfma_f32_16x16x32_bf16 {t(PV,4)}, {t(4*(q&1),4)}, {src(0)}, {first or t(PV,4)}")
            for x in ab[:2]: A(x)
            A(f"v_mfma_f32_16x16x32_bf16 {t(PV+4,4)}, {t(4*(q&1),4)}, {src(1)}, {first or t(PV+4,4)}")
            for x in ab[2:]: A(x)
            for x in ex_ops: A(x)
        A.stamp(2)
        A(f"s_lshl_b32 s98, {sWave}, 10"); A(f"s_add_u32 s98, s98, {M_L}")
        A(f"v_lshlrev_b32 v12, 5, {vL15}"); A(f"v_lshl_add_u32 v12, {vG}, 4, v12"); A("v_add_u32 v12, s98, v12")
        A(f"s_lshl_b32 s98, {sWave}, 3"); A(f"s_add_u32 s98, s98, {MW_L}"); A("v_mov_b32 v13, s98")
        A("s_mov_b32 exec_hi, 0")
        A(f"ds_write_b128 v12, {t(PV,4)}"); A(f"ds_write_b128 v12, {t(PV+4,4)} offset:512")
        A(f"ds_write2_b32 v13, {t(MX)}, {t(LSUM)} offset0:0 offset1:1")
        A("s_mov_b32 exec_hi, -1")
        A("s_waitcnt lgkmcnt(0)"); A("s_barrier")

    def op_publish(self):
        A = self
        A.stamp(3)
        A(f"v_lshlrev_b32 v12, 4, {vLane}"); A(f"v_add_u32 v12, {M_L}, v12"); A(f"v_mov_b32 v13, {MW_L}")
        for w in range(4): A(f"ds_read_b128 {t(4*w,4)}, v12 offset:{1024*w}")
        A(f"ds_read_b128 {t(16,4)}, v13"); A(f"ds_read_b128 {t(20,4)}, v13 offset:16")
        A.addr_OP("v14"); A.addr_ML("v15")
        A("s_waitcnt lgkmcnt(0)")
        m = [t(16), t(18), t(20), t(22)]; l = [t(17), t(19), t(21), t(23)]
        A(f"v_max3_f32 {t(24)}, {m[0]}, {m[1]}, {m[2]}"); A(f"v_max_f32 {t(24)}, {t(24)}, {m[3]}")
        for w in range(4): A(f"v_sub_f32 {m[w]}, {m[w]}, {t(24)}")
        for w in range(4): A(f"v_exp_f32 {m[w]}, {m[w]}")
        for r in range(4): A(f"v_mul_f32 {t(r)}, {t(r)}, {m[0]}")
        A(f"v_mul_f32 {t(25)}, {l[0]}, {m[0]}")
        for w in range(1, 4):
            for r in range(4): A(f"v_fmac_f32 {t(r)}, {t(4*w+r)}, {m[w]}")
            A(f"v_fmac_f32 {t(25)}, {l[w]}, {m[w]}")
        A(f"v_cvt_pk_bf16_f32 {t(4)}, {t(0)}, {t(1)}"); A(f"v_cvt_pk_bf16_f32 {t(5)}, {t(2)}, {t(3)}")
        A.publish("buffer_store_dwordx2", t(4, 2), "v14", sL)
        A.exec_set(1)
        A.publish("buffer_store_dwordx2", t(24, 2), "v15", sL)
        A.exec_all()
        A.stamp(4)

    def build(self):
        A = self
        K = NAME + "_kernel"
        A("s_cmp_ge_u32 s2, 256"); A("s_cbranch_scc1 L_end")
        A("s_load_dwordx16 s[64:79], s[0:1], 0"); A("s_load_dwordx8 s[80:87], s[0:1], 64")
        if self.pre:
            A("s_getpc_b64 s[98:99]"); A("v_lshlrev_b32 v12, 4, v0")
            for k in range(self.pre):
                A(f"global_load_dwordx4 {t(40+4*(k%4),4)}, v12, s[98:99]")
                if k + 1 < self.pre: A("v_add_u32 v12, 4096, v12")
        if self.prof: A("s_memrealtime s[100:101]")
        A("v_lshrrev_b32 v1, 6, v0"); A(f"v_and_b32 {vLane}, 63, v0"); A(f"v_readfirstlane_b32 {sWave}, v1")
        A(f"s_and_b32 {sX}, s2, 7"); A(f"s_lshr_b32 {sI}, s2, 3")
        A(f"s_lshl_b32 {sH}, {sX}, 1"); A(f"s_lshr_b32 s98, {sI}, 4"); A(f"s_add_u32 {sH}, {sH}, s98")
        A(f"s_and_b32 {sI16}, {sI}, 15"); A(f"s_lshr_b32 {sB}, {sI16}, 3")
        A(f"s_lshl_b32 s96, {sB}, 25"); A(f"s_lshl_b32 s98, {sH}, 21"); A("s_add_u32 s96, s96, s98")
        A(f"s_and_b32 s98, {sI16}, 7"); A("s_lshl_b32 s98, s98, 18"); A("s_add_u32 s96, s96, s98")
        A(f"s_lshl_b32 s98, {sWave}, 16"); A("s_add_u32 s96, s96, s98")
        A(f"s_lshl_b32 s97, {sWave}, 1"); A(f"s_add_u32 s97, s97, {sI}"); A(f"s_add_u32 s97, s97, {sX}")
        for kb in range(8):
            A(f"s_add_u32 s98, s97, {kb}"); A("s_and_b32 s98, s98, 7"); A("s_lshl_b32 s98, s98, 13"); A(f"s_add_u32 {sBlk(kb)}, s96, s98")
        A(f"v_lshrrev_b32 {vK}, 2, {vLane}"); A(f"v_lshlrev_b32 {vK}, 9, {vK}"); A(f"v_and_b32 {vDum}, 3, {vLane}"); A(f"v_lshl_add_u32 {vK}, {vDum}, 4, {vK}")
        A("s_waitcnt lgkmcnt(0)")
        def srd(base, plo, size):
            A(f"s_mov_b32 s{base}, s{plo}"); A(f"s_mov_b32 s{base+1}, s{plo+1}"); A(f"s_mov_b32 s{base+2}, {size}"); A(f"s_mov_b32 s{base+3}, 0x20000")
        srd(12, 66, 0x4000000); srd(20, 70, 448*4096*2)
        A(f"s_lshl_b32 s99, {sH}, 9"); A(f"s_lshl_b32 s98, {sI16}, 5"); A("s_add_u32 s99, s99, s98")
        A(f"v_lshrrev_b32 v12, 1, {vLane}"); A("v_lshlrev_b32 v12, 13, v12"); A(f"v_and_b32 {vDum}, 1, {vLane}"); A(f"v_lshl_add_u32 v12, {vDum}, 4, v12"); A("v_add_u32 v12, s99, v12")
        A(f"s_lshl_b32 s98, {sWave}, 18"); A(f"s_lshl_b32 s99, {sWave}, 10"); A(f"s_add_u32 s99, s99, {WQ_L}")
        for k in range(4):
            A("s_mov_b32 m0, s99")
            A(f"buffer_load_dwordx4 v12, {SWQ}, s98 offen {self.wpol} lds")
            if k < 3: A(f"s_add_u32 s98, s98, {4*32*8192}"); A("s_add_u32 s99, s99, 4096")
        srd(40, 64, 1792); srd(8, 86, WS_SIZE)
        A("s_mov_b32 s92, -1"); A("s_mov_b32 s93, 0x00FFFFFF")
        w1, w2 = A.lab("w1early"), A.lab("w2early")
        A(f"s_cmp_eq_u32 {sWave}, 1"); A(f"s_cbranch_scc0 {w1}")
        A(f"v_and_b32 v12, 1, {vLane}"); A("v_mul_u32_u24 v12, 896, v12"); A(f"v_lshrrev_b32 v13, 1, {vLane}"); A("v_lshl_add_u32 v12, v13, 5, v12")
        A.exec_set(EX_VIEW)
        A(f"buffer_load_dwordx4 {t(72,4)}, v12, {XIN}, 0 offen"); A(f"buffer_load_dwordx4 {t(76,4)}, v12, {XIN}, 0 offen offset:16")
        A.exec_all()
        for r in range(4): A(f"v_mov_b32 {t(r)}, -1")
        A(f"s_mul_i32 s98, s2, 3072"); A("s_add_u32 s98, s98, 0x4000"); A(f"v_lshlrev_b32 v12, 4, {vLane}")
        for k in range(3): A(f"buffer_store_dwordx4 {t(0,4)}, v12, {WS}, s98 offen offset:{1024*k} sc1")
        A(f"{w1}:")
        for f in range(min(16, self.K0)): A.kload(f)
        srd(16, 68, 0x4000000); srd(24, 72, 4096*448*2)
        srd(28, 76, 448*1792*2); srd(32, 78, 448*1792*2); srd(36, 80, 1792*448*2); srd(44, 82, 1792)
        A("s_mov_b32 s48, s84"); A("s_mov_b32 s49, s85")
        A(f"s_mov_b32 {sOnes}, 0x3F803F80"); A(f"s_mov_b32 {sC}, 0x3DB8AA3B")
        A(f"v_and_b32 {vL15}, 15, {vLane}"); A(f"v_lshrrev_b32 {vG}, 4, {vLane}")
        A(f"s_mov_b32 {sL}, 0"); A(f"s_mov_b32 {sLi}, 0"); A(f"s_mov_b32 {sFast}, 0"); A(f"s_mov_b32 {sSpin}, 0x10000")
        A("s_mov_b32 s88, 0x01010101"); A("s_mov_b32 s89, 0x01010101"); A("s_mov_b32 s90, 0x00030003"); A("s_mov_b32 s91, 0x00030003")
        A("s_mov_b32 s94, 0xFF"); A("s_mov_b32 s95, 0xFF")
        A(f"s_getreg_b32 {sFlag}, hwreg(HW_REG_XCC_ID, 0, 4)"); A(f"s_or_b32 {sFlag}, {sFlag}, 0x80")
        A(f"v_lshlrev_b32 {vV0}, 9, {vG}"); A(f"v_lshl_add_u32 {vV0}, {vL15}, 4, {vV0}"); A(f"v_add_u32 {vV1}, 4096, {vV0}")
        A(f"v_and_b32 {vOdd}, 1, {vLane}"); A(f"v_sub_u32 {vOdd}, 0, {vOdd}")
        A(f"v_bfe_u32 {vHi}, {vLane}, 1, 1"); A(f"v_sub_u32 {vHi}, 0, {vHi}")
        A(f"v_xor_b32 v12, 0xFFFF, {vOdd}")
        A(f"v_lshrrev_b32 v13, 1, {vL15}")
        for r in range(4):
            A(f"v_cmp_eq_u32 vcc, {r}, v13"); A(f"v_cndmask_b32 v{vM[r]}, 0, v12, vcc")
        A(f"s_lshl_b32 s98, {sH}, 10"); A(f"s_lshl_b32 s99, {sB}, 9"); A("s_add_u32 s98, s98, s99")
        A(f"v_and_b32 v12, 3, {vLane}"); A("v_lshlrev_b32 v12, 4, v12"); A("v_add_u32 v12, s98, v12")
        A(f"v_bfe_u32 v13, {vLane}, 2, 2"); A(f"v_mov_b32 {vQoff}, {OOB}")
        A(f"v_cmp_eq_u32 vcc, v13, {vG}"); A(f"v_cndmask_b32 {vQoff}, {vQoff}, v12, vcc")
        sk = A.lab("cx"); A(f"s_cmp_eq_u32 {sWave}, 2"); A(f"s_cbranch_scc0 {sk}")
        A(f"v_bfe_u32 v12, {vLane}, 2, 1"); A("v_mul_u32_u24 v12, 896, v12"); A(f"v_and_b32 {vDum}, 3, {vLane}"); A(f"v_lshl_add_u32 v12, {vDum}, 3, v12")
        A(f"v_lshl_add_u32 v12, {vG}, 1, v12"); A(f"s_lshl_b32 s98, {sI}, 5"); A("v_add_u32 v12, s98, v12")
        A(f"buffer_load_ushort {vRes}, v12, {XIN}, 0 offen")
        A(f"{sk}:")
        for f in range(16, self.K0): A.kload(f)
        wb1, wb2 = A.lab("wb1"), A.lab("wb2")
        A(f"s_cmp_eq_u32 {sWave}, 1"); A(f"s_cbranch_scc1 {wb1}")
        A(f"s_waitcnt vmcnt({self.K0})"); A(f"s_branch {wb2}")
        A(f"{wb1}:"); A(f"s_waitcnt vmcnt({self.K0 + 3})")
        A(f"{wb2}:")
        A.stamp(10)
        A("s_barrier")
        A.stamp(11)
        A("L_top:")
        sk = A.lab("ns7"); k1 = A.lab("k1"); A(f"s_cmp_eq_u32 {sWave}, 1"); A(f"s_cbranch_scc0 {sk}")
        A.ln_gemv('q')
        A(f"s_cmp_eq_u32 {sLi}, 0"); A(f"s_cbranch_scc0 {sk}")
        for f in range(self.K0, self.K0 + 8): A.kload(f)
        A("s_waitcnt vmcnt(8)")
        A(f"s_lshl_b32 s98, {sX}, 5"); A(f"s_add_u32 s98, s98, {sI}"); A("s_and_b32 s99, s98, 3"); A("s_lshl_b32 s99, s99, 3")
        A(f"s_lshl_b32 s99, {sFlag}, s99"); A("s_and_b32 s98, s98, 0xFC")
        A("v_mov_b32 v12, s98"); A("v_mov_b32 v13, s99")
        A.exec_set("1"); A(f"global_atomic_or v12, v13, {sDbg} sc1"); A.exec_all()
        A.dstamp(3)
        A(f"s_branch {k1}")
        A(f"{sk}:")
        A(f"s_cmp_eq_u32 {sLi}, 0"); A(f"s_cbranch_scc0 {k1}")
        A.kpaced(self.K0, self.K0 + 8, self.D)
        A(f"{k1}:")
        l1, att = A.lab("l1q"), A.lab("att")
        A(f"s_cmp_eq_u32 {sLi}, 0"); A(f"s_cbranch_scc0 {l1}")
        A.kpaced(self.K0 + 8, 48, self.D)
        A(f"s_mul_i32 s99, {sH}, {256*896}"); A(f"s_lshl_b32 s98, {sI16}, 6"); A("s_add_u32 s99, s99, s98")
        A.rows32("v12", 896, "s99")
        A(f"s_mul_i32 s98, {sWave}, {32*896}"); A(f"s_lshl_b32 s99, {sWave}, 10"); A(f"s_add_u32 s99, s99, {WO0_L}")
        for k in range(4):
            A("s_mov_b32 m0, s99")
            A(f"buffer_load_dwordx4 v12, {SWO}, s98 offen {self.wpol} lds")
            if k == 1: A(f"s_sub_u32 s98, s98, {4*32*896 - 32}")
            elif k < 3: A(f"s_add_u32 s98, s98, {4*32*896}")
            if k < 3: A("s_add_u32 s99, s99, 4096")
        if self.instream:
            A.kpaced(48, 56, self.D)
            A(f"s_mul_i32 s99, {sX}, 448"); A(f"s_lshl_b32 s98, {sI}, 4"); A("s_add_u32 s99, s99, s98")
            A(f"v_mul_u32_u24 v12, 3584, {vLane}"); A("v_add_u32 v12, s99, v12")
            for (srd, base) in ((SWG, WG_L), (SWU, WU_L)):
                A(f"s_mul_i32 s98, {sWave}, {64*3584}"); A(f"s_lshl_b32 s99, {sWave}, 10"); A(f"s_add_u32 s99, s99, {base}")
                A("s_mov_b32 m0, s99"); A(f"buffer_load_dwordx4 v12, {srd}, s98 offen {self.wpol} lds")
                sk3 = A.lab("sk3"); A(f"s_cmp_eq_u32 {sWave}, 3"); A(f"s_cbranch_scc1 {sk3}")
                A(f"s_add_u32 s98, s98, {4*64*3584}"); A("s_add_u32 s99, s99, 4096")
                A("s_mov_b32 m0, s99"); A(f"buffer_load_dwordx4 v12, {srd}, s98 offen {self.wpol} lds")
                A(f"{sk3}:")
            A(f"s_mul_i32 s99, {sX}, {224*896}"); A(f"s_lshl_b32 s98, {sI}, 5"); A("s_add_u32 s99, s99, s98")
            A.rows32("v12", 896, "s99")
            A(f"s_mul_i32 s98, {sWave}, {32*896}"); A(f"s_lshl_b32 s99, {sWave}, 10"); A(f"s_add_u32 s99, s99, {WD_L}")
            A("s_mov_b32 m0, s99"); A(f"buffer_load_dwordx4 v12, {SWD}, s98 offen {self.wpol} lds")
            sk3 = A.lab("sk3"); A(f"s_cmp_eq_u32 {sWave}, 3"); A(f"s_cbranch_scc1 {sk3}")
            A(f"s_add_u32 s98, s98, {4*32*896}"); A("s_add_u32 s99, s99, 4096")
            A("s_mov_b32 m0, s99"); A(f"buffer_load_dwordx4 v12, {SWD}, s98 offen {self.wpol} lds")
            A(f"{sk3}:")
            A.kpaced(56, 64, self.D)
        else:
            A.kpaced(48, 64, self.D)
        A(f"v_lshlrev_b32 v12, 2, {vLane}")
        A(f"global_load_dword v14, v12, {sDbg} sc1")
        A.vgroup(range(0, self.FV))
        A(f"s_waitcnt vmcnt({2*self.FV})")
        A(f"v_lshlrev_b32 {vRes}, 16, {vRes}")
        fchk, fok = A.lab("fchk"), A.lab("fok")
        A(f"{fchk}:")
        A("v_and_b32 v13, 0x80808080, v14"); A("v_cmp_ne_u32 vcc, 0x80808080, v13")
        A(f"s_cbranch_vccz {fok}")
        A(f"global_load_dword v14, v12, {sDbg} sc1"); A("s_waitcnt vmcnt(0)")
        A(f"s_sub_u32 {sSpin}, {sSpin}, 1"); A(f"s_cmp_gt_i32 {sSpin}, 0"); A(f"s_cbranch_scc1 {fchk}")
        A(f"{fok}:")
        A(f"s_mul_i32 s98, {sFlag}, 0x01010101"); A("v_cmp_eq_u32 vcc, s98, v14")
        A(f"s_lshl_b32 s99, {sX}, 3"); A("s_lshr_b64 s[98:99], vcc, s99"); A("s_and_b32 s98, s98, 0xFF")
        A("s_cmp_eq_u32 s98, 0xFF"); A(f"s_cselect_b32 {sFast}, 1, 0")
        if getattr(self, 'force_slow', False): A(f"s_mov_b32 {sFast}, 0")
        for x in A.q_loads(): A(x)
        A.vgroup(range(self.FV, self.QV))
        A(f"s_waitcnt vmcnt({2*(self.QV-self.FV)})")
        A.check(range(T(0), T(32)), T(32))
        A(f"s_cbranch_vccz {att}")
        A(f"{l1}:")
        A.poll(A.q_loads(), range(T(0), T(32)), T(32))
        A(f"{att}:")
        A.stamp(0)
        A.attention()
        lw = [A.lab("cw") for _ in range(4)]; nxt = A.lab("next")
        for k in (1, 2, 3):
            A(f"s_cmp_eq_u32 {sWave}, {k}"); A(f"s_cbranch_scc1 {lw[k]}")
        A.S2(0)
        A(f"s_cmp_ge_u32 {sI}, 28"); A(f"s_cbranch_scc1 {nxt}")
        sk = A.lab("wdsk")
        if not self.instream: A(f"s_cmp_eq_u32 {sLi}, 0"); A(f"s_cbranch_scc0 {sk}"); A.wd_tile(); A(f"{sk}:")
        A.S5()
        A(f"s_branch {nxt}")
        A(f"{lw[1]}:")
        A.S2(1)
        A(f"s_lshl_b32 s98, {sX}, 11"); A(f"s_add_u32 s98, s98, {X2_O}"); A("s_add_u32 s40, s8, s98"); A("s_addc_u32 s41, s9, 0")
        A(f"s_branch {nxt}")
        A(f"{lw[2]}:")
        A(f"s_cmp_ge_u32 {sI}, 28"); A(f"s_cbranch_scc1 {nxt}")
        A.reduce_stage('Y')
        sk = A.lab("s6skip")
        A(f"s_cmp_eq_u32 {sLi}, 0"); A(f"s_cselect_b32 s98, 0, {sX}"); A("s_cmp_eq_u32 s98, 0"); A(f"s_cbranch_scc0 {nxt}")
        A.reduce_stage('Z')
        A(f"s_branch {nxt}")
        A(f"{lw[3]}:")
        A.op_publish()
        A(f"s_cmp_ge_u32 {sI}, 28"); A(f"s_cbranch_scc1 {nxt}")
        sk = A.lab("wgsk")
        if not self.instream: A(f"s_cmp_eq_u32 {sLi}, 0"); A(f"s_cbranch_scc0 {sk}"); A.wgu_tiles(); A(f"{sk}:")
        A("s_waitcnt vmcnt(0)")
        A.ln_gemv('f')
        A(f"{nxt}:")
        A(f"s_cmp_eq_u32 {sLi}, 0"); A("s_cbranch_scc0 L_fin")
        A(f"s_mov_b32 {sLi}, 1"); A(f"s_mov_b32 {sL}, {LS}")
        if self.prof: self.dump_stamps(0)
        A("s_branch L_top")
        A("L_fin:")
        if self.prof:
            A.stamp(10); self.dump_stamps(1)
        A("L_end:"); A("s_endpgm")
        body = fix(self.L, verbose=True)
        s = header([f"grid=(256,1,1) block=(256,1,1) lds={LDS_TOTAL}"], "decode: persistent attention (K/V on chip) + GLU chain") + kernel_begin(K) + "\n".join("  " + x for x in body) + "\n" + f".fill ({self.pre*4096 + 64} - (. - {K})) / 4, 4, 0xBF810000\n" * (1 if self.pre else 0) + kernel_desc(K, 512, 102, 256)
        return s
    def dump_stamps(self, layer):
        A = self
        A(f"s_lshl_b32 s98, s2, 2"); A(f"s_add_u32 s98, s98, {sWave}"); A("s_lshl_b32 s98, s98, 8"); A(f"s_add_u32 s98, s98, {STAMP_O + layer*128}")
        A("v_mov_b32 v12, s98")
        A.exec_set("1")
        for k in range(13):
            lo = 64 + 2*k if k < 12 else 100
            A(f"v_mov_b32 v14, s{lo}"); A(f"v_mov_b32 v15, s{lo+1}")
            A(f"global_store_dwordx2 v12, v[14:15], s[8:9] offset:{8*k}")
        A.exec_all()
if __name__ == "__main__":
    import argparse
    ap = argparse.ArgumentParser()
    ap.add_argument("-o", default="k.s"); ap.add_argument("--prof", action="store_true"); ap.add_argument("--slow", action="store_true")
    ap.add_argument("--pol", default="nt"); ap.add_argument("--wpol", default="")
    ap.add_argument("-D", type=int, default=16); ap.add_argument("--FV", type=int, default=4); ap.add_argument("--QV", type=int, default=12)
    ap.add_argument("--post", action="store_true"); ap.add_argument("--grp", type=int, default=2); ap.add_argument("--K0", type=int, default=24); ap.add_argument("--dbgst", action="store_true"); ap.add_argument("--pre", type=int, default=4)
    a = ap.parse_args()
    g = G(prof=a.prof, pol=a.pol, wpol=a.wpol); g.force_slow = a.slow
    g.instream = not a.post; g.grp = a.grp; g.K0 = a.K0; g.dbgst = a.dbgst; g.pre = a.pre; g.D = a.D; g.FV = a.FV; g.QV = a.QV
    open(a.o, "w").write(g.build())
```
